```python
import torch

def _softmax(x, axis=-1):
    return torch.softmax(x, dim=axis)
def _gelu(x):
    return torch.nn.functional.gelu(x, approximate="tanh")
def _silu(x):
    return torch.nn.functional.silu(x)
def _sigmoid(x):
    return torch.sigmoid(x)
def _layernorm(x, axis=-1, eps=1e-5):
    m = x.mean(dim=axis, keepdim=True)
    v = x.var(dim=axis, keepdim=True, unbiased=False)
    return (x - m) / torch.sqrt(v + eps)
def _scatter_add(tgt, idx, src, axis=0):
    return tgt.clone().index_add_(axis, idx, src)
def _segment_sum(src, seg, n):
    out = torch.zeros((n,) + src.shape[1:], dtype=src.dtype)
    return out.index_add_(0, seg, src)
def _pad(x, pw):
    flat = tuple(v for pair in reversed(pw) for v in pair)
    return torch.nn.functional.pad(x, flat)

kernel_name = 'gather_scatter__cheap_equivariant_egnn__graph'

def setup_inputs():

    _w = (lambda a: (lambda t: t.to(torch.bfloat16) if t.is_floating_point() else t)(torch.as_tensor(a)))
    N, deg, D, De = 10000, 16, 256, max(0, 1)
    E = N * deg
    return {
        "h": _w((lambda *s: torch.randn(*s, dtype=torch.bfloat16) * 0.2)(N, D)),
        "pos": _w((lambda *s: torch.randn(*s, dtype=torch.bfloat16) * 0.8)(N, 3)),
        "e_attr": _w((lambda *s: torch.randn(*s, dtype=torch.bfloat16) * 0.8)(E, De)),
        "src": _w((lambda lo, hi, *s: torch.randint(lo, hi, s))(0, N, E).to(torch.int64)),
        "dst": _w((lambda lo, hi, *s: torch.randint(lo, hi, s))(0, N, E).to(torch.int64)),
        "w_e": _w(0.1 * (lambda *s: torch.randn(*s, dtype=torch.bfloat16) * 0.8)(2 * D + 1 + De, D)),
        "w_x": _w(0.1 * (lambda *s: torch.randn(*s, dtype=torch.bfloat16) * 0.2)(D, 1)),
        "w_h": _w(0.1 * (lambda *s: torch.randn(*s, dtype=torch.bfloat16) * 0.2)(2 * D, D)),
    }

def reference(h, pos, e_attr, src, dst, w_e, w_x, w_h):
    N, D = h.shape[0], h.shape[1]
    diff = pos[dst] - pos[src]
    dist2 = torch.sum(diff * diff, axis=-1, keepdims=True)
    e_in = torch.concatenate([h[dst], h[src], dist2, e_attr], axis=-1)
    m_ij = _silu(e_in @ w_e)
    coord_scale = m_ij @ w_x
    pos_new = pos + _segment_sum(diff * coord_scale, dst, N)
    m_i = _segment_sum(m_ij, dst, N)
    h_new = h + _silu(torch.concatenate([h, m_i], axis=-1) @ w_h)
    return h_new, pos_new
```

```python
import re

TRANS = ('v_exp_f32', 'v_rcp_f32', 'v_log_f32', 'v_rsq_f32', 'v_sqrt_f32', 'v_sin_f32', 'v_cos_f32', 'v_rcp_iflag_f32')

def parse_regs(tok):
    tok = tok.strip()
    tok = tok.lstrip('-')
    m = re.match(r'abs\((.*)\)$', tok)
    if m: tok = m.group(1)
    m = re.match(r'([vsa])\[(\d+):(\d+)\]$', tok)
    if m:
        return {(m.group(1), i) for i in range(int(m.group(2)), int(m.group(3)) + 1)}
    m = re.match(r'([vsa])(\d+)$', tok)
    if m:
        return {(m.group(1), int(m.group(2)))}
    if tok in ('vcc', 'vcc_lo', 'vcc_hi'):
        return {('vcc', 0)}
    if tok == 'exec':
        return {('exec', 0)}
    if tok == 'm0':
        return {('m0', 0)}
    return set()

class Gen:
    def __init__(self):
        self.lines = []
        self.hist = []
        self.auto = True

    def raw(self, text):
        self.lines.append(text)

    def comment(self, text):
        self.lines.append('    ; ' + text)

    def label(self, name):
        self.lines.append(name + ':')

    def fence(self):
        self.hist = []

    def _need(self, info):
        need = 0
        dist = 0
        for h in reversed(self.hist):
            req = 0
            if h['valu']:
                wv = h['wv']; ws = h['ws']
                if wv & info['rv']:
                    if info['dpp'] and (wv & info['dpp_src']): req = max(req, 2)
                    if info['readlane'] : req = max(req, 1)
                    if info['mfma']: req = max(req, 2)
                    if info['permlane']: req = max(req, 2)
                    if h['trans'] and info['valu'] and not info['trans']: req = max(req, 1)
                if ws & info['rs']:
                    if info['valu']: req = max(req, 2)
                    if info['vmem']: req = max(req, 5)
                    if info['lanesel'] and (ws & info['lanesel']): req = max(req, 4)
                if h['wexec'] and (info['mfma'] or info['readlane']): req = max(req, 4)
                if h['wexec'] and info['dpp']: req = max(req, 5)
            if h['mfma']:
                d = h['wv']
                passes = h['passes']
                rw = info['rv'] | info['wv']
                if d & rw:
                    if info['mfma']:
                        if d & info['ab']: req = max(req, {4: 8, 8: 12, 2: 5, 16: 20}[passes])
                        elif (d & info['c']) and d != info['c']: req = max(req, {4: 6, 8: 10, 2: 4, 16: 18}[passes])
                    else:
                        req = max(req, {4: 8, 8: 12, 2: 5, 16: 20}[passes])
            if h['store_wide'] and info['valu'] and (h['rv_data'] & info['wv']):
                req = max(req, 2)
            if req > dist:
                need = max(need, req - dist)
            dist += h['slots']
            if dist >= 20: break
        return need

    def __call__(self, text):
        text = text.strip()
        if not text: return
        parts = text.split(None, 1)
        op = parts[0]
        rest = parts[1] if len(parts) > 1 else ''
        ops = [o.strip() for o in rest.split(',')] if rest else []
        toks = []
        mods = ''
        for i, o in enumerate(ops):
            sp = o.split()
            if not sp: continue
            toks.append(sp[0])
            if len(sp) > 1: mods += ' ' + ' '.join(sp[1:])
        info = dict(valu=False, trans=False, dpp=False, dpp_src=set(), readlane=False, mfma=False, permlane=False,
                    vmem=False, rv=set(), rs=set(), wv=set(), ws=set(), wexec=False, ab=set(), c=set(), lanesel=set(),
                    passes=0, store_wide=False, rv_data=set(), slots=1)
        if op == 's_nop':
            info['slots'] = int(toks[0], 0) + 1
            self.hist.append(info); self.lines.append('    ' + text); return
        if op.startswith('v_mfma'):
            info['mfma'] = True
            info['passes'] = 8 if '32x32x16' in op else (4 if '16x16x32' in op else (16 if '32x32x2_f32' in op else 8))
            d = parse_regs(toks[0]); a = parse_regs(toks[1]); b = parse_regs(toks[2]); c = parse_regs(toks[3])
            info['wv'] = d; info['ab'] = a | b; info['c'] = c; info['rv'] = a | b | c
        elif op.startswith('v_'):
            info['valu'] = True
            info['trans'] = any(op.startswith(t) for t in TRANS)
            if any(k in mods for k in ('row_shr', 'row_shl', 'row_ror', 'row_bcast', 'quad_perm', 'row_mirror', 'row_half_mirror', 'wave_')):
                info['dpp'] = True
            if op.startswith('v_readlane') or op.startswith('v_readfirstlane'):
                info['readlane'] = True
            if op.startswith('v_permlane'):
                info['permlane'] = True
            dst = parse_regs(toks[0])
            srcs = [parse_regs(t) for t in toks[1:]]
            if op.startswith('v_cmpx'):
                info['wexec'] = True
            for r in dst:
                if r[0] == 'v': info['wv'].add(r)
                else: info['ws'].add(r)
            if op.startswith('v_add_co') or op.startswith('v_addc_co') or op.startswith('v_sub_co'):
                for r in srcs[0]: info['ws'].add(r)
                srcs = srcs[1:]
            if op.startswith('v_fmac') or op.startswith('v_pk_fmac') or op.startswith('v_dot2c'):
                info['rv'] |= {r for r in dst if r[0] == 'v'}
            if op.startswith('v_writelane'):
                info['rv'] |= {r for r in dst if r[0] == 'v'}
            if op.startswith('v_permlane32_swap') or op.startswith('v_permlane16_swap'):
                info['rv'] |= {r for r in dst if r[0] == 'v'}
                for r in srcs[0]:
                    if r[0] == 'v': info['wv'].add(r)
            if 'd16_hi' in op: info['rv'] |= {r for r in dst if r[0] == 'v'}
            for i, s in enumerate(srcs):
                for r in s:
                    if r[0] == 'v': info['rv'].add(r)
                    else: info['rs'].add(r)
            if info['dpp'] and srcs:
                info['dpp_src'] = {r for r in srcs[0] if r[0] == 'v'}
            if (op.startswith('v_readlane') or op.startswith('v_writelane')) and len(srcs) > 1:
                info['lanesel'] = {r for r in srcs[1] if r[0] != 'v'}
            if op.startswith('v_cndmask') and len(toks) == 3:
                info['rs'].add(('vcc', 0))
            if op.startswith('v_cmp') and not op.startswith('v_cmpx') and len(toks) < 3:
                info['ws'].add(('vcc', 0))
        elif op.startswith('buffer_') or op.startswith('global_') or op.startswith('flat_'):
            info['vmem'] = True
            for t in toks:
                for r in parse_regs(t):
                    if r[0] == 'v': info['rv'].add(r)
                    else: info['rs'].add(r)
            if 'load' in op or 'atomic' in op:
                if 'load' in op:
                    d = parse_regs(toks[0])
                    info['rv'] -= d
                    info['wv'] |= {r for r in d if r[0] == 'v'}
                    if 'd16_hi' in op or 'd16' in op: info['rv'] |= {r for r in d if r[0] == 'v'}
            if 'store' in op and ('x4' in op or 'x3' in op):
                info['store_wide'] = True
                dtok = toks[0] if op.startswith('buffer_') else toks[1]
                info['rv_data'] = {r for r in parse_regs(dtok) if r[0] == 'v'}
        elif op.startswith('ds_'):
            for i, t in enumerate(toks):
                rr = parse_regs(t)
                if i == 0 and ('read' in op or 'rtn' in op or 'bpermute' in op or 'permute' in op or 'swizzle' in op):
                    info['wv'] |= {r for r in rr if r[0] == 'v'}
                    if 'd16' in op: info['rv'] |= {r for r in rr if r[0] == 'v'}
                else:
                    info['rv'] |= {r for r in rr if r[0] == 'v'}
        else:
            pass
        if self.auto:
            n = self._need(info)
            if n > 0:
                self.lines.append(f'    s_nop {n - 1}')
                self.hist.append(dict(valu=False, trans=False, dpp=False, dpp_src=set(), readlane=False, mfma=False,
                                      permlane=False, vmem=False, rv=set(), rs=set(), wv=set(), ws=set(), wexec=False,
                                      ab=set(), c=set(), lanesel=set(), passes=0, store_wide=False, rv_data=set(), slots=n))
        self.hist.append(info)
        if len(self.hist) > 40: self.hist = self.hist[-40:]
        self.lines.append('    ' + text)

    def text(self):
        return '\n'.join(self.lines) + '\n'
```

```python
import sys
from asmgen import Gen

N = 10000
E = 160000
D = 256
T = 40
NT = 250
CH = 1024
NCH = 157

OFF_B = 0x0000000
OFF_A = 0x0800000
OFF_TBL = 0x1400000
OFF_REC = 0x1500000
OFF_WHT = 0x1800000

NEG_LOG2E = '0xbfb8aa3b'
NEG_LN2 = '0xbf317218'

K1_GEMM = 628
K1_SORT = K1_GEMM + NCH
K1_TR = K1_SORT + 16

g = Gen()
DEBUG = len(sys.argv) > 2
P = g

def srd(d, lo, hi, nbytes, off=0):
    if off:
        P(f's_add_u32 s{d}, s{lo}, {off}')
        P(f's_addc_u32 s{d+1}, s{hi}, 0')
        P(f's_and_b32 s{d+1}, s{d+1}, 0xffff')
    else:
        P(f's_mov_b32 s{d}, s{lo}')
        P(f's_and_b32 s{d+1}, s{hi}, 0xffff')
    P(f's_mov_b32 s{d+2}, {nbytes}')
    P(f's_mov_b32 s{d+3}, 0x00020000')

def header():
    g.raw('''; EGNN layer: K1 (node GEMMs A'=h@W1, B'=h@W2, per-chunk edge bucketing, w_h transpose) then K2 (edge phase + node update)
; @launch kernel=egnn_prep_kernel grid=(%d,1,1) block=(256,1,1) lds=69632
; @launch kernel=gather_scatter__cheap_equivariant_egnn__graph_kernel grid=(%d,1,1) block=(1024,1,1) lds=148608
.amdgcn_target "amdgcn-amd-amdhsa--gfx950"
.text''' % (K1_TR, NT))

def kernel_begin(name):
    g.raw(f'.globl {name}\n.p2align 8\n.type {name},@function\n{name}:')
    g.fence()

def kernel_desc(name, vgpr, sgpr=102):
    acc = (vgpr + 3) // 4 * 4
    g.raw(f'''.section .rodata,"a"
.p2align 6
.amdhsa_kernel {name}
  .amdhsa_next_free_vgpr {vgpr}
  .amdhsa_next_free_sgpr {sgpr}
  .amdhsa_accum_offset {acc}
  .amdhsa_group_segment_fixed_size 0
  .amdhsa_kernarg_size 88
  .amdhsa_user_sgpr_count 2
  .amdhsa_user_sgpr_kernarg_segment_ptr 1
  .amdhsa_system_sgpr_workgroup_id_x 1
.end_amdhsa_kernel
.text''')

def load_ptrs():
    P('s_load_dwordx16 s[4:19], s[0:1], 0')
    P('s_load_dwordx2 s[20:21], s[0:1], 80')
    P('s_load_dwordx2 s[22:23], s[0:1], 64')

def k1():
    kernel_begin('egnn_prep_kernel')
    load_ptrs()
    P(f's_cmp_ge_u32 s2, {K1_GEMM}')
    P('s_cbranch_scc1 K1_NOTGEMM')
    P('s_waitcnt lgkmcnt(0)')
    srd(24, 14, 15, 514 * 512)
    srd(28, 4, 5, N * 512)
    P('s_and_b32 s40, s2, 3')
    P('s_lshr_b32 s41, s2, 2')
    P('s_lshr_b32 s42, s40, 1')
    P('s_lshl_b32 s42, s42, 17')
    P('s_and_b32 s43, s40, 1')
    P('s_lshl_b32 s44, s43, 8')
    P('s_add_u32 s42, s42, s44')
    P('v_lshrrev_b32 v1, 4, v0')
    P('v_and_b32 v2, 15, v0')
    P('v_lshlrev_b32 v3, 9, v1')
    P('v_lshl_add_u32 v3, v2, 4, v3')
    for i in range(16):
        P(f's_add_u32 s45, s42, {i * 8192}')
        P(f'buffer_load_dwordx4 v[{8 + 4 * i}:{11 + 4 * i}], v3, s[24:27], s45 offen')
    P('v_and_b32 v4, 63, v0')
    P('v_lshrrev_b32 v5, 6, v0')
    P('s_lshl_b32 s46, s41, 6')
    P('v_lshlrev_b32 v5, 4, v5')
    P('v_add_u32 v5, s46, v5')
    P('v_and_b32 v6, 15, v4')
    P('v_add_u32 v5, v5, v6')
    P('v_lshrrev_b32 v6, 4, v4')
    P('v_lshlrev_b32 v7, 9, v5')
    P('v_lshl_add_u32 v7, v6, 4, v7')
    for ks in range(8):
        P(f'buffer_load_dwordx4 v[{72 + 4 * ks}:{75 + 4 * ks}], v7, s[28:31], 0 offen offset:{ks * 64}')
    P('v_mul_u32_u24 v104, 272, v1')
    P('v_lshl_add_u32 v104, v2, 4, v104')
    for i in range(16):
        P(f's_waitcnt vmcnt({8 + 15 - i})')
        P(f'ds_write_b128 v104, v[{8 + 4 * i}:{11 + 4 * i}] offset:{i * 4352}')
    srd(32, 20, 21, N * 1024, OFF_A)
    srd(36, 20, 21, N * 512, OFF_B)
    P('v_bfe_u32 v105, v4, 2, 2')
    P('v_lshl_add_u32 v105, v6, 3, v105')
    P('v_mul_u32_u24 v105, 272, v105')
    P('v_and_b32 v106, 3, v4')
    P('v_lshl_add_u32 v105, v106, 3, v105')
    P('v_lshlrev_b32 v106, 10, v5')
    P('v_lshl_add_u32 v106, v6, 4, v106')
    P('v_lshlrev_b32 v107, 9, v5')
    P('v_lshl_add_u32 v107, v6, 3, v107')
    P('s_lshl_b32 s47, s43, 9')
    P('s_lshl_b32 s48, s43, 8')
    P(f's_mov_b32 s49, {NEG_LOG2E}')
    P('s_waitcnt lgkmcnt(0)')
    P('s_barrier')
    P('s_waitcnt vmcnt(0)')
    for nt in range(8):
        for ks in range(8):
            P(f'ds_read_b64_tr_b16 v[{8 + 4 * ks}:{9 + 4 * ks}], v105 offset:{ks * 8704 + nt * 32}')
            P(f'ds_read_b64_tr_b16 v[{10 + 4 * ks}:{11 + 4 * ks}], v105 offset:{ks * 8704 + nt * 32 + 1088}')
        for ks in range(8):
            P(f's_waitcnt lgkmcnt({14 - 2 * ks})')
            c = '0' if ks == 0 else 'v[40:43]'
            P(f'v_mfma_f32_16x16x32_bf16 v[40:43], v[{8 + 4 * ks}:{11 + 4 * ks}], v[{72 + 4 * ks}:{75 + 4 * ks}], {c}')
        for r in range(4):
            P(f'v_mul_f32 v{44 + r}, s49, v{40 + r}')
        P('s_cmp_ge_u32 s40, 2')
        P(f's_cbranch_scc1 K1_STB{nt}')
        P(f'buffer_store_dwordx4 v[44:47], v106, s[32:35], s47 offen offset:{nt * 64}')
        P(f's_branch K1_STD{nt}')
        g.label(f'K1_STB{nt}')
        P('v_cvt_pk_bf16_f32 v48, v44, v45')
        P('v_cvt_pk_bf16_f32 v49, v46, v47')
        P(f'buffer_store_dwordx2 v[48:49], v107, s[36:39], s48 offen offset:{nt * 32}')
        g.label(f'K1_STD{nt}')
        P('s_nop 1')
    P('s_endpgm')

    g.label('K1_NOTGEMM')
    g.fence()
    P(f's_cmp_ge_u32 s2, {K1_SORT}')
    P('s_cbranch_scc1 K1_NOTSORT')
    P(f's_sub_u32 s40, s2, {K1_GEMM}')
    P('s_waitcnt lgkmcnt(0)')
    srd(24, 12, 13, E * 4)
    srd(28, 10, 11, E * 4)
    srd(32, 8, 9, E * 2)
    srd(36, 6, 7, N * 6)
    P('v_lshlrev_b32 v1, 2, v0')
    P('v_mov_b32 v2, 0')
    P('ds_write_b32 v1, v2')
    P('s_lshl_b32 s41, s40, 10')
    P('v_lshlrev_b32 v3, 2, v0')
    P('v_add_u32 v3, s41, v3')
    P(f'v_cmp_gt_u32 vcc, {E}, v3')
    P('s_and_saveexec_b64 s[42:43], vcc')
    P('v_lshlrev_b32 v1, 2, v3')
    P('buffer_load_dwordx4 v[4:7], v1, s[24:27], 0 offen')
    P('buffer_load_dwordx4 v[8:11], v1, s[28:31], 0 offen')
    P('v_lshlrev_b32 v1, 1, v3')
    P('buffer_load_dwordx2 v[12:13], v1, s[32:35], 0 offen')
    P('s_waitcnt lgkmcnt(0)')
    P('s_barrier')
    P('s_waitcnt vmcnt(0)')
    P('s_mov_b32 s44, 0x06666667')
    for j in range(4):
        for (idx, dreg) in ((4 + j, 16 + 4 * j), (8 + j, 18 + 4 * j)):
            P(f'v_mul_u32_u24 v1, 6, v{idx}')
            P('v_and_b32 v1, -4, v1')
            P(f'buffer_load_dwordx2 v[{dreg}:{dreg + 1}], v1, s[36:39], 0 offen')
    for j in range(4):
        P(f'v_mul_hi_u32 v{32 + j}, s44, v{4 + j}')
        P(f'v_mul_u32_u24 v1, 40, v{32 + j}')
        P(f'v_sub_u32 v{36 + j}, v{4 + j}, v1')
        P(f'v_lshlrev_b32 v1, 2, v{32 + j}')
        P('v_mov_b32 v2, 1')
        P(f'ds_add_rtn_u32 v{40 + j}, v1, v2')
    P('s_waitcnt vmcnt(0)')
    for j in range(4):
        pd = 16 + 4 * j; ps = 18 + 4 * j
        for (idx, r) in ((4 + j, pd), (8 + j, ps)):
            P(f'v_and_b32 v1, 1, v{idx}')
            P('v_lshlrev_b32 v1, 4, v1')
            P(f'v_lshrrev_b64 v[{r}:{r + 1}], v1, v[{r}:{r + 1}]')
        P(f'v_lshlrev_b32 v1, 16, v{pd}')
        P(f'v_lshlrev_b32 v2, 16, v{ps}')
        P('v_sub_f32 v44, v1, v2')
        P(f'v_and_b32 v1, 0xffff0000, v{pd}')
        P(f'v_and_b32 v2, 0xffff0000, v{ps}')
        P('v_sub_f32 v45, v1, v2')
        P(f'v_lshlrev_b32 v1, 16, v{pd + 1}')
        P(f'v_lshlrev_b32 v2, 16, v{ps + 1}')
        P('v_sub_f32 v46, v1, v2')
        P('v_cvt_pk_bf16_f32 v50, v44, v45')
        P('v_cvt_pk_bf16_f32 v51, v46, v46')
        P('v_and_b32 v51, 0xffff, v51')
        P('v_lshlrev_b32 v44, 16, v50')
        P('v_and_b32 v45, 0xffff0000, v50')
        P('v_lshlrev_b32 v46, 16, v51')
        P('v_mul_f32 v44, v44, v44')
        P('v_mul_f32 v45, v45, v45')
        P('v_mul_f32 v46, v46, v46')
        P('v_cvt_pk_bf16_f32 v47, v44, v45')
        P('v_cvt_pk_bf16_f32 v48, v46, v46')
        P('v_lshlrev_b32 v44, 16, v47')
        P('v_and_b32 v45, 0xffff0000, v47')
        P('v_lshlrev_b32 v46, 16, v48')
        P('v_add_f32 v44, v44, v45')
        P('v_add_f32 v44, v44, v46')
        P('v_cvt_pk_bf16_f32 v44, v44, v44')
        P('v_and_b32 v44, 0xffff0000, v44')
        if j & 1:
            P(f'v_lshrrev_b32 v45, 16, v{12 + (j >> 1)}')
        else:
            P(f'v_and_b32 v45, 0xffff, v{12 + (j >> 1)}')
        P(f'v_or_b32 v{56 + 4 * j + 1}, v44, v45')
        P(f'v_lshl_or_b32 v{56 + 4 * j}, v{36 + j}, 16, v{8 + j}')
        P(f'v_mov_b32 v{56 + 4 * j + 2}, v50')
        P(f'v_mov_b32 v{56 + 4 * j + 3}, v51')
    P('s_mov_b64 exec, s[42:43]')
    P('s_waitcnt lgkmcnt(0)')
    P('s_barrier')
    P('v_cmp_gt_u32 vcc, 64, v0')
    P('s_and_saveexec_b64 s[42:43], vcc')
    P('s_cbranch_execz K1_SKIPSCAN')
    P('v_lshlrev_b32 v1, 4, v0')
    P('ds_read_b128 v[80:83], v1')
    P('s_waitcnt lgkmcnt(0)')
    P('v_add_u32 v84, v80, v81')
    P('v_add_u32 v85, v84, v82')
    P('v_add_u32 v86, v85, v83')
    P('v_mov_b32 v88, v86')
    for sh in (1, 2, 4, 8):
        P(f'v_add_u32_dpp v88, v88, v88 row_shr:{sh} row_mask:0xf bank_mask:0xf bound_ctrl:0')
    P('v_add_u32_dpp v88, v88, v88 row_bcast:15 row_mask:0xa bank_mask:0xf')
    P('v_add_u32_dpp v88, v88, v88 row_bcast:31 row_mask:0xc bank_mask:0xf')
    P('v_sub_u32 v88, v88, v86')
    P('v_add_u32 v89, v88, v80')
    P('v_add_u32 v90, v88, v84')
    P('v_add_u32 v91, v88, v85')
    P('ds_write_b128 v1, v[88:91]')
    P('v_lshl_or_b32 v92, v89, 16, v88')
    P('v_lshl_or_b32 v93, v91, 16, v90')
    srd(24, 20, 21, NCH * 512, OFF_TBL)
    P('s_lshl_b32 s44, s40, 9')
    P('v_lshlrev_b32 v1, 3, v0')
    P('buffer_store_dwordx2 v[92:93], v1, s[24:27], s44 offen')
    g.label('K1_SKIPSCAN')
    P('s_mov_b64 exec, s[42:43]')
    P('s_waitcnt lgkmcnt(0)')
    P('s_barrier')
    srd(28, 20, 21, E * 16, OFF_REC)
    P(f'v_cmp_gt_u32 vcc, {E}, v3')
    P('s_and_saveexec_b64 s[42:43], vcc')
    for j in range(4):
        P(f'v_lshlrev_b32 v1, 2, v{32 + j}')
        P(f'ds_read_b32 v{44 + j}, v1')
    P('s_waitcnt lgkmcnt(0)')
    for j in range(4):
        P(f'v_add_u32 v1, v{44 + j}, v{40 + j}')
        P('v_add_u32 v1, s41, v1')
        P('v_lshlrev_b32 v1, 4, v1')
        P(f'buffer_store_dwordx4 v[{56 + 4 * j}:{59 + 4 * j}], v1, s[28:31], 0 offen')
    P('s_endpgm')

    g.label('K1_NOTSORT')
    g.fence()
    P(f's_cmp_ge_u32 s2, {K1_TR}')
    P('s_cbranch_scc1 K1_END')
    P(f's_sub_u32 s40, s2, {K1_SORT}')
    P('s_waitcnt lgkmcnt(0)')
    srd(24, 18, 19, 512 * 512)
    srd(28, 20, 21, 256 * 1024, OFF_WHT)
    P('v_lshlrev_b32 v1, 1, v0')
    P('s_lshl_b32 s41, s40, 14')
    for j in range(32):
        P(f's_add_u32 s42, s41, {j * 512}')
        P(f'buffer_load_ushort v{32 + j}, v1, s[24:27], s42 offen')
    P('s_waitcnt vmcnt(0)')
    for j in range(16):
        P(f'v_lshl_or_b32 v{8 + j}, v{33 + 2 * j}, 16, v{32 + 2 * j}')
    P('v_lshlrev_b32 v2, 10, v0')
    P('s_lshl_b32 s41, s40, 6')
    P('s_waitcnt vmcnt(0)')
    for q in range(4):
        P(f'buffer_store_dwordx4 v[{8 + 4 * q}:{11 + 4 * q}], v2, s[28:31], s41 offen offset:{q * 16}')
    g.label('K1_END')
    P('s_endpgm')


M_ACC = 0
POS_ACC = 40960
CNT = 41600
NSTART = CNT + 256
LTOT = CNT + 512 - 16
SORTED = 42112
ATILE = 74880
UNSORTED = 115840
XT = 74880
XPITCH = 1040
CAP = 2048

def k2():
    kernel_begin('gather_scatter__cheap_equivariant_egnn__graph_kernel')
    P(f's_cmp_ge_u32 s2, {NT}')
    P('s_cbranch_scc1 K2_END')
    load_ptrs()
    P('v_and_b32 v1, 63, v0')
    P('v_lshrrev_b32 v2, 6, v0')
    P('s_nop 0')
    P('v_readfirstlane_b32 s60, v2')
    P('s_mul_i32 s61, s2, 40')
    P('s_waitcnt lgkmcnt(0)')
    srd(24, 20, 21, NCH * 512, OFF_TBL)
    srd(28, 20, 21, E * 16, OFF_REC)
    srd(32, 20, 21, N * 512, OFF_B)
    srd(36, 20, 21, N * 1024, OFF_A)
    srd(40, 4, 5, N * 512)
    srd(44, 22, 23, 5180000)
    srd(48, 20, 21, 256 * 1024, OFF_WHT)
    srd(52, 6, 7, N * 6)
    srd(56, 14, 15, 514 * 512)
    P('s_cmp_ge_u32 s60, 3')
    P('s_cbranch_scc1 K2_NOTBL')
    P(f'v_cmp_gt_u32 vcc, {NCH}, v0')
    P('s_and_saveexec_b64 s[62:63], vcc')
    P('v_lshlrev_b32 v3, 9, v0')
    P('s_lshl_b32 s64, s2, 1')
    P('buffer_load_ushort v4, v3, s[24:27], s64 offen')
    P('buffer_load_ushort v5, v3, s[24:27], s64 offen offset:2')
    P('s_mov_b64 exec, s[62:63]')
    g.label('K2_NOTBL')
    P('v_lshlrev_b32 v3, 3, v1')
    P(f'buffer_load_dwordx2 v[8:9], v3, s[56:59], 0 offen offset:0')
    g.lines.pop()
    P(f's_mov_b32 s64, {512 * 512}')
    P('buffer_load_dwordx2 v[8:9], v3, s[56:59], s64 offen')
    P(f's_mov_b32 s64, {513 * 512}')
    P('buffer_load_dwordx2 v[10:11], v3, s[56:59], s64 offen')
    srd(64, 16, 17, 512)
    P('buffer_load_dwordx2 v[12:13], v3, s[64:67], 0 offen')
    P('v_lshlrev_b32 v3, 4, v0')
    P('s_lshl_b32 s68, s61, 10')
    P('buffer_load_dwordx4 v[96:99], v3, s[36:39], s68 offen')
    P('s_add_u32 s69, s68, 16384')
    P('buffer_load_dwordx4 v[100:103], v3, s[36:39], s69 offen')
    P('s_add_u32 s69, s68, 32768')
    P('v_cmp_gt_u32 vcc, 512, v0')
    P('s_and_saveexec_b64 s[62:63], vcc')
    P('buffer_load_dwordx4 v[104:107], v3, s[36:39], s69 offen')
    P('s_mov_b64 exec, s[62:63]')
    P('s_lshl_b32 s68, s61, 9')
    P('buffer_load_dwordx4 v[108:111], v3, s[40:43], s68 offen')
    P('s_add_u32 s69, s68, 16384')
    P('v_cmp_gt_u32 vcc, 256, v0')
    P('s_and_saveexec_b64 s[62:63], vcc')
    P('buffer_load_dwordx4 v[112:115], v3, s[40:43], s69 offen')
    P('s_mov_b64 exec, s[62:63]')
    P('v_mov_b32 v16, 0')
    P('v_mov_b32 v17, 0')
    P('v_mov_b32 v18, 0')
    P('v_mov_b32 v19, 0')
    P('ds_write_b128 v3, v[16:19]')
    P('ds_write_b128 v3, v[16:19] offset:16384')
    P(f'v_cmp_gt_u32 vcc, {(SORTED - 32768) // 16}, v0')
    P('s_and_saveexec_b64 s[62:63], vcc')
    P('ds_write_b128 v3, v[16:19] offset:32768')
    P('s_mov_b64 exec, s[62:63]')
    P('s_waitcnt lgkmcnt(0)')
    P('s_barrier')
    P('s_cmp_ge_u32 s60, 3')
    P('s_cbranch_scc1 K2_P1DONE')
    P(f'v_cmp_gt_u32 vcc, {NCH}, v0')
    P('s_and_saveexec_b64 s[62:63], vcc')
    P('s_cbranch_execz K2_P1SKIP')
    P('s_mov_b64 s[70:71], exec')
    P('s_waitcnt vmcnt(0)')
    P('v_sub_u32 v6, v5, v4')
    P(f'v_mov_b32 v3, {LTOT}')
    P('ds_add_rtn_u32 v7, v3, v6')
    if DEBUG:
        srd(64, 20, 21, 250 * 65536, 0x2000000)
        P('s_lshl_b32 s68, s2, 16')
        P('s_add_u32 s68, s68, 40960')
        P('s_waitcnt lgkmcnt(0)')
        P('v_lshlrev_b32 v3, 4, v0')
        P('v_mov_b32 v20, v4')
        P('v_mov_b32 v21, v5')
        P('v_mov_b32 v22, v6')
        P('v_mov_b32 v23, v7')
        P('buffer_store_dwordx4 v[20:23], v3, s[64:67], s68 offen')
    P('v_lshl_add_u32 v4, v0, 10, v4')
    P('v_lshlrev_b32 v4, 4, v4')
    P('s_waitcnt lgkmcnt(0)')
    P('v_lshlrev_b32 v7, 4, v7')
    P(f'v_add_u32 v7, {UNSORTED}, v7')
    g.label('K2_P1LOOP')
    for q in range(4):
        P(f'v_cmp_lt_u32 vcc, {q}, v6')
        P('s_and_b64 exec, s[70:71], vcc')
        P(f'buffer_load_dwordx4 v[{20 + 4 * q}:{23 + 4 * q}], v4, s[28:31], 0 offen offset:{q * 16}')
    P('s_waitcnt vmcnt(0)')
    for q in range(4):
        P('s_mov_b64 exec, s[70:71]')
        P(f'v_cmp_lt_u32 vcc, {q}, v6')
        P('s_and_b64 exec, s[70:71], vcc')
        P(f'ds_write_b128 v7, v[{20 + 4 * q}:{23 + 4 * q}] offset:{q * 16}')
    P('s_mov_b64 exec, s[70:71]')
    P('v_subrev_u32 v6, 4, v6')
    P('v_add_u32 v4, 64, v4')
    P('v_add_u32 v7, 64, v7')
    P('v_cmp_lt_i32 vcc, 0, v6')
    P('s_and_b64 s[70:71], exec, vcc')
    P('s_cbranch_scc1 K2_P1LOOP')
    g.label('K2_P1SKIP')
    P('s_mov_b64 exec, s[62:63]')
    g.label('K2_P1DONE')
    P('s_waitcnt vmcnt(0)')
    P('v_lshlrev_b32 v3, 4, v0')
    P(f'v_add_u32 v4, {ATILE}, v3')
    P(f'ds_write_b128 v4, v[96:99]')
    P('ds_write_b128 v4, v[100:103] offset:16384')
    P('v_cmp_gt_u32 vcc, 512, v0')
    P('s_and_saveexec_b64 s[62:63], vcc')
    P('ds_write_b128 v4, v[104:107] offset:32768')
    P('s_mov_b64 exec, s[62:63]')
    P(f's_mov_b32 s64, {NEG_LOG2E}')
    P(f's_mov_b32 s65, {NEG_LN2}')
    for (src, dst, sc) in ((8, 16, 's64'), (10, 20, 's64'), (12, 24, 's65')):
        P(f'v_lshlrev_b32 v{dst}, 16, v{src}')
        P(f'v_and_b32 v{dst + 1}, 0xffff0000, v{src}')
        P(f'v_lshlrev_b32 v{dst + 2}, 16, v{src + 1}')
        P(f'v_and_b32 v{dst + 3}, 0xffff0000, v{src + 1}')
        for r in range(4):
            P(f'v_mul_f32 v{dst + r}, {sc}, v{dst + r}')
    P('s_waitcnt lgkmcnt(0)')
    P('s_barrier')
    P(f'v_mov_b32 v3, {LTOT}')
    P('ds_read_b32 v4, v3')
    P('s_waitcnt lgkmcnt(0)')
    P('v_readfirstlane_b32 s66, v4')
    for hh in range(2):
        P(f'v_add_u32 v4, {1024 * hh}, v0')
        P('v_cmp_gt_u32 vcc, s66, v4')
        P('s_and_saveexec_b64 s[62:63], vcc')
        P('v_lshlrev_b32 v4, 4, v4')
        P(f'v_add_u32 v4, {UNSORTED}, v4')
        P(f'ds_read_b128 v[{28 + 4 * hh}:{31 + 4 * hh}], v4')
        P('s_waitcnt lgkmcnt(0)')
        P(f'v_lshrrev_b32 v5, 16, v{28 + 4 * hh}')
        P('v_lshlrev_b32 v5, 2, v5')
        P(f'v_add_u32 v5, {CNT}, v5')
        P('v_mov_b32 v6, 1')
        P(f'ds_add_rtn_u32 v{36 + hh}, v5, v6')
        P('s_mov_b64 exec, s[62:63]')
    P('s_waitcnt lgkmcnt(0)')
    P('s_barrier')
    P('s_cmp_lg_u32 s60, 0')
    P('s_cbranch_scc1 K2_NOSCAN')
    P('v_lshlrev_b32 v3, 2, v1')
    P(f'ds_read_b32 v4, v3 offset:{CNT}')
    P('s_waitcnt lgkmcnt(0)')
    P('v_mov_b32 v5, v4')
    for sh in (1, 2, 4, 8):
        P(f'v_add_u32_dpp v5, v5, v5 row_shr:{sh} row_mask:0xf bank_mask:0xf bound_ctrl:0')
    P('v_add_u32_dpp v5, v5, v5 row_bcast:15 row_mask:0xa bank_mask:0xf')
    P('v_add_u32_dpp v5, v5, v5 row_bcast:31 row_mask:0xc bank_mask:0xf')
    P('v_sub_u32 v5, v5, v4')
    P(f'ds_write_b32 v3, v5 offset:{NSTART}')
    g.label('K2_NOSCAN')
    P('s_waitcnt lgkmcnt(0)')
    P('s_barrier')
    for hh in range(2):
        P(f'v_add_u32 v4, {1024 * hh}, v0')
        P('v_cmp_gt_u32 vcc, s66, v4')
        P('s_and_saveexec_b64 s[62:63], vcc')
        P(f'v_lshrrev_b32 v5, 16, v{28 + 4 * hh}')
        P('v_lshlrev_b32 v5, 2, v5')
        P(f'ds_read_b32 v6, v5 offset:{NSTART}')
        P('s_waitcnt lgkmcnt(0)')
        P(f'v_add_u32 v6, v6, v{36 + hh}')
        P('v_lshlrev_b32 v6, 4, v6')
        P(f'ds_write_b128 v6, v[{28 + 4 * hh}:{31 + 4 * hh}] offset:{SORTED}')
        P('s_mov_b64 exec, s[62:63]')
    P('s_waitcnt lgkmcnt(0)')
    P('s_barrier')
    if DEBUG:
        srd(64, 20, 21, 250 * 65536, 0x2000000)
        P('s_lshl_b32 s68, s2, 16')
        P('v_lshlrev_b32 v3, 5, v0')
        P(f'v_add_u32 v4, {SORTED}, v3')
        P('ds_read_b128 v[96:99], v4')
        P('ds_read_b128 v[100:103], v4 offset:16')
        P('s_waitcnt lgkmcnt(0)')
        P('buffer_store_dwordx4 v[96:99], v3, s[64:67], s68 offen')
        P('buffer_store_dwordx4 v[100:103], v3, s[64:67], s68 offen offset:16')
        P('v_lshlrev_b32 v3, 2, v0')
        P(f'v_add_u32 v4, {CNT}, v3')
        P('ds_read_b32 v96, v4')
        P('s_waitcnt lgkmcnt(0)')
        P('v_cmp_gt_u32 vcc, 128, v0')
        P('s_and_saveexec_b64 s[62:63], vcc')
        P('s_add_u32 s68, s68, 32768')
        P('buffer_store_dword v96, v3, s[64:67], s68 offen')
        P('s_mov_b64 exec, s[62:63]')
    P('s_add_u32 s67, s66, 15')
    P('s_lshr_b32 s67, s67, 4')
    P('s_mul_i32 s68, s67, s60')
    P('s_add_u32 s69, s68, s67')
    P('s_min_u32 s69, s69, s66')
    P('s_cmp_ge_u32 s68, s69')
    P('s_cbranch_scc1 K2_P2DONE')
    P('v_lshlrev_b32 v2, 3, v1')
    P('v_lshlrev_b32 v3, 4, v1')
    P('v_min_u32 v4, 2, v1')
    P('v_lshlrev_b32 v4, 1, v4')
    P('s_lshl_b32 s70, s68, 4')
    P(f's_add_u32 s70, s70, {SORTED}')
    P('v_mov_b32 v5, s70')
    P('v_add_u32 v4, v4, v5')
    RING = 8
    for k in range(RING + 1):
        P(f'ds_read_b64 v[{66 + 2 * k}:{67 + 2 * k}], v5 offset:{16 * k}')
    P('s_waitcnt lgkmcnt(0)')
    for k in range(RING):
        P(f'v_readfirstlane_b32 s{72 + 2 * k}, v{66 + 2 * k}')
        P(f'v_readfirstlane_b32 s{73 + 2 * k}, v{67 + 2 * k}')
    P('v_mov_b32 v66, v82')
    P('v_mov_b32 v67, v83')
    for k in range(RING):
        P(f's_and_b32 s71, s{72 + 2 * k}, 0xffff')
        P('s_lshl_b32 s71, s71, 9')
        P(f'buffer_load_dwordx2 v[{40 + 2 * k}:{41 + 2 * k}], v2, s[32:35], s71 offen')
    P(f'v_add_u32 v5, {16 * (RING + 1)}, v5')
    P('s_lshr_b32 s90, s72, 16')
    P('s_lshl_b32 s91, s90, 10')
    P(f's_add_u32 s91, s91, {ATILE}')
    P('v_add_u32 v6, s91, v3')
    P('ds_read_b128 v[28:31], v6')
    for r in range(4):
        P(f'v_mov_b32 v{32 + r}, 0')
    P('v_mov_b32 v36, 0')
    P('s_waitcnt lgkmcnt(0)')
    g.label('K2_ELOOP')
    for k in range(RING):
        b0 = 40 + 2 * k
        P('s_waitcnt lgkmcnt(0)')
        P('v_readfirstlane_b32 s92, v66')
        P('v_readfirstlane_b32 s93, v67')
        P('ds_read_b64 v[66:67], v5')
        P('ds_read_u16_d16_hi v37, v4 offset:8')
        P('v_add_u32 v5, 16, v5')
        P('v_add_u32 v4, 16, v4')
        P(f's_lshr_b32 s94, s{72 + 2 * k}, 16')
        P('s_cmp_lg_u32 s94, s90')
        P(f's_cbranch_scc1 K2_FLUSH{k}')
        g.label(f'K2_RESUME{k}')
        g.fence()
        P(f's_and_b32 s95, s{73 + 2 * k}, 0xffff0000')
        P(f's_lshl_b32 s96, s{73 + 2 * k}, 16')
        P(f's_waitcnt vmcnt({RING - 1})')
        P(f'v_lshlrev_b32 v56, 16, v{b0}')
        P(f'v_and_b32 v57, 0xffff0000, v{b0}')
        P(f'v_lshlrev_b32 v58, 16, v{b0 + 1}')
        P(f'v_and_b32 v59, 0xffff0000, v{b0 + 1}')
        P(f's_mov_b32 s{72 + 2 * k}, s92')
        P(f's_mov_b32 s{73 + 2 * k}, s93')
        P('s_and_b32 s92, s92, 0xffff')
        P('s_lshl_b32 s92, s92, 9')
        for r in range(4):
            P(f'v_add_f32 v{56 + r}, v{56 + r}, v{28 + r}')
        P(f'buffer_load_dwordx2 v[{b0}:{b0 + 1}], v2, s[32:35], s92 offen')
        for r in range(4):
            P(f'v_fmac_f32 v{56 + r}, s95, v{16 + r}')
        for r in range(4):
            P(f'v_fmac_f32 v{56 + r}, s96, v{20 + r}')
        for r in range(4):
            P(f'v_exp_f32 v{60 + r}, v{56 + r}')
        for r in range(4):
            P(f'v_add_f32 v{60 + r}, 1.0, v{60 + r}')
        for r in range(4):
            P(f'v_rcp_f32 v{60 + r}, v{60 + r}')
        for r in range(4):
            P(f'v_mul_f32 v{56 + r}, v{56 + r}, v{60 + r}')
        P('v_mul_f32 v64, v56, v24')
        for r in range(1, 4):
            P(f'v_fmac_f32 v64, v{56 + r}, v{24 + r}')
        for r in range(4):
            P(f'v_add_f32 v{32 + r}, v{32 + r}, v{56 + r}')
        for sh in (1, 2, 4, 8):
            P(f'v_add_f32_dpp v64, v64, v64 row_shr:{sh} row_mask:0xf bank_mask:0xf bound_ctrl:0')
        P('v_add_f32_dpp v64, v64, v64 row_bcast:15 row_mask:0xa bank_mask:0xf')
        P('v_add_f32_dpp v64, v64, v64 row_bcast:31 row_mask:0xc bank_mask:0xf')
        P('v_readlane_b32 s97, v64, 63')
        P('s_waitcnt lgkmcnt(0)')
        P('v_fmac_f32 v36, s97, v37')
        P('s_add_u32 s68, s68, 1')
        P('s_cmp_ge_u32 s68, s69')
        P('s_cbranch_scc1 K2_EEND')
    P('s_branch K2_ELOOP')
    for k in range(RING):
        g.label(f'K2_FLUSH{k}')
        g.fence()
        flush(load_next=True)
        P(f's_branch K2_RESUME{k}')
    g.label('K2_EEND')
    g.fence()
    flush(load_next=False)
    g.label('K2_P2DONE')
    g.fence()
    P('s_waitcnt vmcnt(0) lgkmcnt(0)')
    P('v_and_b32 v2, 15, v1')
    P('v_lshrrev_b32 v3, 4, v1')
    P('s_lshl_b32 s62, s60, 4')
    P('v_add_u32 v4, s62, v2')
    P('v_lshlrev_b32 v4, 10, v4')
    P('v_lshl_add_u32 v4, v3, 4, v4')
    for ks in range(16):
        P(f'buffer_load_dwordx4 v[{16 + 4 * ks}:{19 + 4 * ks}], v4, s[48:51], 0 offen offset:{ks * 64}')
    P('s_barrier')
    P('v_lshrrev_b32 v5, 5, v0')
    P('v_and_b32 v6, 31, v0')
    P(f'v_mul_u32_u24 v7, {XPITCH}, v5')
    P('v_lshl_add_u32 v7, v6, 4, v7')
    P(f'v_add_u32 v7, {XT}, v7')
    P(f'ds_write_b128 v7, v[108:111]')
    P('v_cmp_gt_u32 vcc, 256, v0')
    P('s_and_saveexec_b64 s[62:63], vcc')
    P(f'ds_write_b128 v7, v[112:115] offset:{32 * XPITCH}')
    P('s_mov_b64 exec, s[62:63]')
    P(f's_mov_b32 s65, {NEG_LN2}')
    for hh in range(2):
        if hh:
            P('v_cmp_gt_u32 vcc, 256, v0')
            P('s_and_saveexec_b64 s[62:63], vcc')
        P('v_lshlrev_b32 v8, 10, v5')
        P('v_lshl_add_u32 v8, v6, 5, v8')
        P(f'ds_read_b128 v[96:99], v8 offset:{M_ACC + hh * 32768}')
        P(f'ds_read_b128 v[100:103], v8 offset:{M_ACC + hh * 32768 + 16}')
        P('s_waitcnt lgkmcnt(0)')
        P('v_cvt_pk_bf16_f32 v104, v96, v97')
        P('v_cvt_pk_bf16_f32 v105, v98, v99')
        P('v_cvt_pk_bf16_f32 v106, v100, v101')
        P('v_cvt_pk_bf16_f32 v107, v102, v103')
        P(f'ds_write_b128 v7, v[104:107] offset:{512 + hh * 32 * XPITCH}')
        if hh:
            P('s_mov_b64 exec, s[62:63]')
    P('v_cmp_gt_u32 vcc, 160, v0')
    P('s_and_saveexec_b64 s[62:63], vcc')
    P('v_lshrrev_b32 v8, 2, v0')
    P('v_and_b32 v9, 3, v0')
    P('v_cmp_gt_u32 vcc, 3, v9')
    P('s_and_b64 exec, exec, vcc')
    P('v_lshlrev_b32 v10, 2, v0')
    P(f'ds_read_b32 v11, v10 offset:{POS_ACC}')
    P('v_add_u32 v12, s61, v8')
    P('v_mul_u32_u24 v12, 6, v12')
    P('v_lshl_add_u32 v12, v9, 1, v12')
    P('buffer_load_ushort v13, v12, s[52:55], 0 offen')
    P('s_waitcnt vmcnt(0) lgkmcnt(0)')
    P('v_lshlrev_b32 v13, 16, v13')
    P('v_add_f32 v13, v13, v11')
    P('v_cvt_pk_bf16_f32 v13, v13, v13')
    P('s_mov_b32 s64, 5120000')
    P('buffer_store_short v13, v12, s[44:47], s64 offen')
    P('s_mov_b64 exec, s[62:63]')
    P('s_waitcnt lgkmcnt(0)')
    P('s_barrier')
    P(f'v_mul_u32_u24 v5, {XPITCH}, v2')
    P('v_lshl_add_u32 v5, v3, 4, v5')
    P(f'v_add_u32 v5, {XT}, v5')
    P('s_waitcnt vmcnt(0)')
    for nt in range(3):
        for ks in range(16):
            P(f'ds_read_b128 v[{96 + 4 * (ks % 4)}:{99 + 4 * (ks % 4)}], v5 offset:{nt * 16 * XPITCH + ks * 64}')
            if ks % 4 == 3:
                for kk in range(4):
                    kq = ks - 3 + kk
                    P(f's_waitcnt lgkmcnt({3 - kk})')
                    c = '0' if kq == 0 else f'v[{80 + 4 * nt}:{83 + 4 * nt}]'
                    P(f'v_mfma_f32_16x16x32_bf16 v[{80 + 4 * nt}:{83 + 4 * nt}], v[{16 + 4 * kq}:{19 + 4 * kq}], v[{96 + 4 * kk}:{99 + 4 * kk}], {c}')
    P(f's_mov_b32 s64, 0xbfb8aa3b')
    P('s_lshl_b32 s62, s60, 5')
    P('v_lshlrev_b32 v6, 3, v3')
    P('v_add_u32 v6, s62, v6')
    for nt in range(3):
        P(f'v_add_u32 v7, {16 * nt}, v2')
        P(f'v_mul_u32_u24 v8, {XPITCH}, v7')
        P('v_add_u32 v8, v8, v6')
        P(f'v_add_u32 v8, {XT}, v8')
        P(f'ds_read_b64 v[10:11], v8')
        for r in range(4):
            P(f'v_mul_f32 v{96 + r}, s64, v{80 + 4 * nt + r}')
        for r in range(4):
            P(f'v_exp_f32 v{96 + r}, v{96 + r}')
        for r in range(4):
            P(f'v_add_f32 v{96 + r}, 1.0, v{96 + r}')
        for r in range(4):
            P(f'v_rcp_f32 v{96 + r}, v{96 + r}')
        for r in range(4):
            P(f'v_mul_f32 v{96 + r}, v{96 + r}, v{80 + 4 * nt + r}')
        P('s_waitcnt lgkmcnt(0)')
        P('v_lshlrev_b32 v100, 16, v10')
        P('v_and_b32 v101, 0xffff0000, v10')
        P('v_lshlrev_b32 v102, 16, v11')
        P('v_and_b32 v103, 0xffff0000, v11')
        for r in range(4):
            P(f'v_add_f32 v{96 + r}, v{96 + r}, v{100 + r}')
        P('v_cvt_pk_bf16_f32 v104, v96, v97')
        P('v_cvt_pk_bf16_f32 v105, v98, v99')
        P('v_add_u32 v9, s61, v7')
        P('v_lshlrev_b32 v9, 9, v9')
        P('v_add_u32 v9, v9, v6')
        P(f'v_cmp_gt_u32 vcc, {T}, v7')
        P('s_and_saveexec_b64 s[66:67], vcc')
        P('buffer_store_dwordx2 v[104:105], v9, s[44:47], 0 offen')
        P('s_mov_b64 exec, s[66:67]')
    g.label('K2_END')
    P('s_endpgm')

def flush(load_next):
    P(f's_mov_b32 s98, {NEG_LN2}')
    for r in range(4):
        P(f'v_mul_f32 v{32 + r}, s98, v{32 + r}')
    P('s_lshl_b32 s91, s90, 10')
    P('v_add_u32 v6, s91, v3')
    for r in range(4):
        P(f'ds_add_f32 v6, v{32 + r} offset:{M_ACC + 4 * r}')
    P('s_lshl_b32 s91, s90, 4')
    P(f's_add_u32 s91, s91, {POS_ACC}')
    P('v_lshlrev_b32 v6, 2, v1')
    P('v_add_u32 v6, s91, v6')
    P('s_mov_b64 exec, 7')
    P('ds_add_f32 v6, v36')
    P('s_mov_b64 exec, -1')
    for r in range(4):
        P(f'v_mov_b32 v{32 + r}, 0')
    P('v_mov_b32 v36, 0')
    if load_next:
        P('s_mov_b32 s90, s94')
        P('s_lshl_b32 s91, s90, 10')
        P(f's_add_u32 s91, s91, {ATILE}')
        P('v_add_u32 v6, s91, v3')
        P('ds_read_b128 v[28:31], v6')
        P('s_waitcnt lgkmcnt(0)')

if __name__ == '__main__':
    header()
    k1()
    k2()
    kernel_desc('egnn_prep_kernel', 112)
    kernel_desc('gather_scatter__cheap_equivariant_egnn__graph_kernel', 128)
    out = sys.argv[1] if len(sys.argv) > 1 else 'k.s'
    open(out, 'w').write(g.text())
```

```python
import sys
from asmgen import Gen

N = 10000
E = 160000
D = 256
T = 20
NT = 500
CH = 1024
NCH = 157

OFF_B = 0x0000000
OFF_A = 0x0800000
OFF_TBL = 0x1400000
OFF_REC = 0x1500000
OFF_WHT = 0x1800000

NEG_LOG2E = '0xbfb8aa3b'
NEG_LN2 = '0xbf317218'

LDSK2 = 73728
K1_GEMM = 628
K1_SORT = K1_GEMM + NCH
K1_TR = K1_SORT + 16

g = Gen()
import os
EXP = os.environ.get('EXP','')
DEBUG = len(sys.argv) > 2 and sys.argv[2] == 'dbg'
PROF = len(sys.argv) > 2 and sys.argv[2] == 'prof'
def stamp(i, vreg=126):
    if PROF:
        P('s_memtime s[100:101]')
        P('s_waitcnt lgkmcnt(0)')
        P(f'v_writelane_b32 v{vreg}, s100, {i}')
def prof_store(base, waves_per_wg, vreg=126):
    if PROF:
        srd(64, 20, 21, 0x1000000, base)
        P('v_and_b32 v125, 63, v0')
        P('v_lshlrev_b32 v125, 2, v125')
        P('v_lshrrev_b32 v124, 6, v0')
        P('v_lshlrev_b32 v124, 8, v124')
        P('v_add_u32 v125, v124, v125')
        P(f's_mul_i32 s100, s2, {waves_per_wg * 256}')
        P(f'buffer_store_dword v{vreg}, v125, s[64:67], s100 offen')
P = g

def srd(d, lo, hi, nbytes, off=0):
    if off:
        P(f's_add_u32 s{d}, s{lo}, {off}')
        P(f's_addc_u32 s{d+1}, s{hi}, 0')
        P(f's_and_b32 s{d+1}, s{d+1}, 0xffff')
    else:
        P(f's_mov_b32 s{d}, s{lo}')
        P(f's_and_b32 s{d+1}, s{hi}, 0xffff')
    P(f's_mov_b32 s{d+2}, {nbytes}')
    P(f's_mov_b32 s{d+3}, 0x00020000')

def header():
    g.raw(('''; EGNN layer: K1 (node GEMMs A'=h@W1, B'=h@W2, per-chunk edge bucketing, w_h transpose) then K2 (edge phase + node update)
; @launch kernel=egnn_prep_kernel grid=(%d,1,1) block=(256,1,1) lds=69632
; @launch kernel=gather_scatter__cheap_equivariant_egnn__graph_kernel grid=(%d,1,1) block=(512,1,1) lds=LDSK2
.amdgcn_target "amdgcn-amd-amdhsa--gfx950"
.text''').replace('LDSK2',str(LDSK2)) % (K1_TR, NT))

def kernel_begin(name):
    g.raw(f'.globl {name}\n.p2align 8\n.type {name},@function\n{name}:')
    g.fence()

def kernel_desc(name, vgpr, sgpr=102):
    acc = (vgpr + 3) // 4 * 4
    g.raw(f'''.section .rodata,"a"
.p2align 6
.amdhsa_kernel {name}
  .amdhsa_next_free_vgpr {vgpr}
  .amdhsa_next_free_sgpr {sgpr}
  .amdhsa_accum_offset {acc}
  .amdhsa_group_segment_fixed_size 0
  .amdhsa_kernarg_size 88
  .amdhsa_user_sgpr_count 2
  .amdhsa_user_sgpr_kernarg_segment_ptr 1
  .amdhsa_system_sgpr_workgroup_id_x 1
.end_amdhsa_kernel
.text''')

def load_ptrs():
    P('s_load_dwordx16 s[4:19], s[0:1], 0')
    P('s_load_dwordx2 s[20:21], s[0:1], 80')
    P('s_load_dwordx2 s[22:23], s[0:1], 64')

def k1():
    kernel_begin('egnn_prep_kernel')
    load_ptrs()
    P(f's_cmp_ge_u32 s2, {K1_GEMM}')
    P('s_cbranch_scc1 K1_NOTGEMM')
    P('s_waitcnt lgkmcnt(0)')
    srd(24, 14, 15, 514 * 512)
    srd(28, 4, 5, N * 512)
    P('s_and_b32 s40, s2, 3')
    P('s_lshr_b32 s41, s2, 2')
    P('s_lshr_b32 s42, s40, 1')
    P('s_lshl_b32 s42, s42, 17')
    P('s_and_b32 s43, s40, 1')
    P('s_lshl_b32 s44, s43, 8')
    P('s_add_u32 s42, s42, s44')
    P('v_lshrrev_b32 v1, 4, v0')
    P('v_and_b32 v2, 15, v0')
    P('v_lshlrev_b32 v3, 9, v1')
    P('v_lshl_add_u32 v3, v2, 4, v3')
    for i in range(16):
        P(f's_add_u32 s45, s42, {i * 8192}')
        P(f'buffer_load_dwordx4 v[{8 + 4 * i}:{11 + 4 * i}], v3, s[24:27], s45 offen')
    P('v_and_b32 v4, 63, v0')
    P('v_lshrrev_b32 v5, 6, v0')
    P('s_lshl_b32 s46, s41, 6')
    P('v_lshlrev_b32 v5, 4, v5')
    P('v_add_u32 v5, s46, v5')
    P('v_and_b32 v6, 15, v4')
    P('v_add_u32 v5, v5, v6')
    P('v_lshrrev_b32 v6, 4, v4')
    P('v_lshlrev_b32 v7, 9, v5')
    P('v_lshl_add_u32 v7, v6, 4, v7')
    for ks in range(8):
        P(f'buffer_load_dwordx4 v[{72 + 4 * ks}:{75 + 4 * ks}], v7, s[28:31], 0 offen offset:{ks * 64}')
    P('v_mul_u32_u24 v104, 272, v1')
    P('v_lshl_add_u32 v104, v2, 4, v104')
    for i in range(16):
        P(f's_waitcnt vmcnt({8 + 15 - i})')
        P(f'ds_write_b128 v104, v[{8 + 4 * i}:{11 + 4 * i}] offset:{i * 4352}')
    srd(32, 20, 21, N * 512, OFF_A)
    srd(36, 20, 21, N * 512, OFF_B)
    P('v_bfe_u32 v105, v4, 2, 2')
    P('v_lshl_add_u32 v105, v6, 3, v105')
    P('v_mul_u32_u24 v105, 272, v105')
    P('v_and_b32 v106, 3, v4')
    P('v_lshl_add_u32 v105, v106, 3, v105')
    P('v_lshlrev_b32 v106, 10, v5')
    P('v_lshl_add_u32 v106, v6, 4, v106')
    P('v_lshlrev_b32 v107, 9, v5')
    P('v_lshl_add_u32 v107, v6, 3, v107')
    P('s_lshl_b32 s47, s43, 9')
    P('s_lshl_b32 s48, s43, 8')
    P(f's_mov_b32 s49, {NEG_LOG2E}')
    P('s_waitcnt lgkmcnt(0)')
    P('s_barrier')
    P('s_waitcnt vmcnt(0)')
    for nt in range(8):
        for ks in range(8):
            P(f'ds_read_b64_tr_b16 v[{8 + 4 * ks}:{9 + 4 * ks}], v105 offset:{ks * 8704 + nt * 32}')
            P(f'ds_read_b64_tr_b16 v[{10 + 4 * ks}:{11 + 4 * ks}], v105 offset:{ks * 8704 + nt * 32 + 1088}')
        for ks in range(8):
            P(f's_waitcnt lgkmcnt({14 - 2 * ks})')
            c = '0' if ks == 0 else 'v[40:43]'
            P(f'v_mfma_f32_16x16x32_bf16 v[40:43], v[{8 + 4 * ks}:{11 + 4 * ks}], v[{72 + 4 * ks}:{75 + 4 * ks}], {c}')
        for r in range(4):
            P(f'v_mul_f32 v{44 + r}, s49, v{40 + r}')
        P('v_cvt_pk_bf16_f32 v48, v44, v45')
        P('v_cvt_pk_bf16_f32 v49, v46, v47')
        P('s_cmp_ge_u32 s40, 2')
        P(f's_cbranch_scc1 K1_STB{nt}')
        P(f'buffer_store_dwordx2 v[48:49], v107, s[32:35], s48 offen offset:{nt * 32}')
        P(f's_branch K1_STD{nt}')
        g.label(f'K1_STB{nt}')
        P(f'buffer_store_dwordx2 v[48:49], v107, s[36:39], s48 offen offset:{nt * 32}')
        g.label(f'K1_STD{nt}')
        P('s_nop 1')
    P('s_endpgm')

    g.label('K1_NOTGEMM')
    g.fence()
    P(f's_cmp_ge_u32 s2, {K1_SORT}')
    P('s_cbranch_scc1 K1_NOTSORT')
    P(f's_sub_u32 s40, s2, {K1_GEMM}')
    P('s_waitcnt lgkmcnt(0)')
    srd(24, 12, 13, E * 4)
    srd(28, 10, 11, E * 4)
    srd(32, 8, 9, E * 2)
    srd(36, 6, 7, N * 6)
    P('v_lshlrev_b32 v1, 2, v0')
    P('v_mov_b32 v2, 0')
    P('ds_write_b32 v1, v2')
    P('ds_write_b32 v1, v2 offset:1024')
    P('s_lshl_b32 s41, s40, 10')
    P('v_lshlrev_b32 v3, 2, v0')
    P('v_add_u32 v3, s41, v3')
    P(f'v_cmp_gt_u32 vcc, {E}, v3')
    P('s_and_saveexec_b64 s[42:43], vcc')
    P('v_lshlrev_b32 v1, 2, v3')
    P('buffer_load_dwordx4 v[4:7], v1, s[24:27], 0 offen')
    P('buffer_load_dwordx4 v[8:11], v1, s[28:31], 0 offen')
    P('v_lshlrev_b32 v1, 1, v3')
    P('buffer_load_dwordx2 v[12:13], v1, s[32:35], 0 offen')
    P('s_waitcnt lgkmcnt(0)')
    P('s_barrier')
    P('s_waitcnt vmcnt(0)')
    P('s_mov_b32 s44, 0x0CCCCCCD')
    for j in range(4):
        for (idx, dreg) in ((4 + j, 16 + 4 * j), (8 + j, 18 + 4 * j)):
            P(f'v_mul_u32_u24 v1, 6, v{idx}')
            P('v_and_b32 v1, -4, v1')
            P(f'buffer_load_dwordx2 v[{dreg}:{dreg + 1}], v1, s[36:39], 0 offen')
    for j in range(4):
        P(f'v_mul_hi_u32 v{32 + j}, s44, v{4 + j}')
        P(f'v_mul_u32_u24 v1, {T}, v{32 + j}')
        P(f'v_sub_u32 v{36 + j}, v{4 + j}, v1')
        P(f'v_lshlrev_b32 v1, 2, v{32 + j}')
        P('v_mov_b32 v2, 1')
        P(f'ds_add_rtn_u32 v{40 + j}, v1, v2')
    P('s_waitcnt vmcnt(0)')
    for j in range(4):
        pd = 16 + 4 * j; ps = 18 + 4 * j
        for (idx, r) in ((4 + j, pd), (8 + j, ps)):
            P(f'v_and_b32 v1, 1, v{idx}')
            P('v_lshlrev_b32 v1, 4, v1')
            P(f'v_lshrrev_b64 v[{r}:{r + 1}], v1, v[{r}:{r + 1}]')
        P(f'v_lshlrev_b32 v1, 16, v{pd}')
        P(f'v_lshlrev_b32 v2, 16, v{ps}')
        P('v_sub_f32 v44, v1, v2')
        P(f'v_and_b32 v1, 0xffff0000, v{pd}')
        P(f'v_and_b32 v2, 0xffff0000, v{ps}')
        P('v_sub_f32 v45, v1, v2')
        P(f'v_lshlrev_b32 v1, 16, v{pd + 1}')
        P(f'v_lshlrev_b32 v2, 16, v{ps + 1}')
        P('v_sub_f32 v46, v1, v2')
        P('v_cvt_pk_bf16_f32 v50, v44, v45')
        P('v_cvt_pk_bf16_f32 v51, v46, v46')
        P('v_and_b32 v51, 0xffff, v51')
        P('v_lshlrev_b32 v44, 16, v50')
        P('v_and_b32 v45, 0xffff0000, v50')
        P('v_lshlrev_b32 v46, 16, v51')
        P('v_mul_f32 v44, v44, v44')
        P('v_mul_f32 v45, v45, v45')
        P('v_mul_f32 v46, v46, v46')
        P('v_cvt_pk_bf16_f32 v47, v44, v45')
        P('v_cvt_pk_bf16_f32 v48, v46, v46')
        P('v_lshlrev_b32 v44, 16, v47')
        P('v_and_b32 v45, 0xffff0000, v47')
        P('v_lshlrev_b32 v46, 16, v48')
        P('v_add_f32 v44, v44, v45')
        P('v_add_f32 v44, v44, v46')
        P('v_cvt_pk_bf16_f32 v44, v44, v44')
        P('v_and_b32 v44, 0xffff0000, v44')
        if j & 1:
            P(f'v_lshrrev_b32 v45, 16, v{12 + (j >> 1)}')
        else:
            P(f'v_and_b32 v45, 0xffff, v{12 + (j >> 1)}')
        P(f'v_or_b32 v{56 + 4 * j + 1}, v44, v45')
        P(f'v_lshl_or_b32 v{56 + 4 * j}, v{36 + j}, 16, v{8 + j}')
        P(f'v_mov_b32 v{56 + 4 * j + 2}, v50')
        P(f'v_mov_b32 v{56 + 4 * j + 3}, v51')
    P('s_mov_b64 exec, s[42:43]')
    P('s_waitcnt lgkmcnt(0)')
    P('s_barrier')
    P('v_cmp_gt_u32 vcc, 64, v0')
    P('s_and_saveexec_b64 s[42:43], vcc')
    P('s_cbranch_execz K1_SKIPSCAN')
    P('v_lshlrev_b32 v1, 5, v0')
    P('ds_read_b128 v[80:83], v1')
    P('ds_read_b128 v[84:87], v1 offset:16')
    P('s_waitcnt lgkmcnt(0)')
    for i in range(1, 8):
        P(f'v_add_u32 v{80 + i}, v{80 + i}, v{79 + i}')
    P('v_mov_b32 v88, v87')
    for sh in (1, 2, 4, 8):
        P(f'v_add_u32_dpp v88, v88, v88 row_shr:{sh} row_mask:0xf bank_mask:0xf bound_ctrl:0')
    P('v_add_u32_dpp v88, v88, v88 row_bcast:15 row_mask:0xa bank_mask:0xf')
    P('v_add_u32_dpp v88, v88, v88 row_bcast:31 row_mask:0xc bank_mask:0xf')
    P('v_sub_u32 v88, v88, v87')
    for i in range(1, 8):
        P(f'v_add_u32 v{88 + i}, v88, v{79 + i}')
    P('ds_write_b128 v1, v[88:91]')
    P('ds_write_b128 v1, v[92:95] offset:16')
    for i in range(4):
        P(f'v_lshl_or_b32 v{96 + i}, v{89 + 2 * i}, 16, v{88 + 2 * i}')
    srd(24, 20, 21, NCH * 1024, OFF_TBL)
    P('s_lshl_b32 s44, s40, 10')
    P('v_lshlrev_b32 v1, 4, v0')
    P('buffer_store_dwordx4 v[96:99], v1, s[24:27], s44 offen')
    g.label('K1_SKIPSCAN')
    P('s_mov_b64 exec, s[42:43]')
    P('s_waitcnt lgkmcnt(0)')
    P('s_barrier')
    srd(28, 20, 21, E * 16, OFF_REC)
    P(f'v_cmp_gt_u32 vcc, {E}, v3')
    P('s_and_saveexec_b64 s[42:43], vcc')
    for j in range(4):
        P(f'v_lshlrev_b32 v1, 2, v{32 + j}')
        P(f'ds_read_b32 v{44 + j}, v1')
    P('s_waitcnt lgkmcnt(0)')
    for j in range(4):
        P(f'v_add_u32 v1, v{44 + j}, v{40 + j}')
        P('v_add_u32 v1, s41, v1')
        P('v_lshlrev_b32 v1, 4, v1')
        P(f'buffer_store_dwordx4 v[{56 + 4 * j}:{59 + 4 * j}], v1, s[28:31], 0 offen')
    P('s_endpgm')

    g.label('K1_NOTSORT')
    g.fence()
    P(f's_cmp_ge_u32 s2, {K1_TR}')
    P('s_cbranch_scc1 K1_END')
    P(f's_sub_u32 s40, s2, {K1_SORT}')
    P('s_waitcnt lgkmcnt(0)')
    srd(24, 18, 19, 512 * 512)
    srd(28, 20, 21, 256 * 1024, OFF_WHT)
    P('v_lshlrev_b32 v1, 1, v0')
    P('s_lshl_b32 s41, s40, 14')
    for j in range(32):
        P(f's_add_u32 s42, s41, {j * 512}')
        P(f'buffer_load_ushort v{32 + j}, v1, s[24:27], s42 offen')
    P('s_waitcnt vmcnt(0)')
    for j in range(16):
        P(f'v_lshl_or_b32 v{8 + j}, v{33 + 2 * j}, 16, v{32 + 2 * j}')
    P('v_lshlrev_b32 v2, 10, v0')
    P('s_lshl_b32 s41, s40, 6')
    P('s_waitcnt vmcnt(0)')
    for q in range(4):
        P(f'buffer_store_dwordx4 v[{8 + 4 * q}:{11 + 4 * q}], v2, s[28:31], s41 offen offset:{q * 16}')
    g.label('K1_END')
    P('s_endpgm')


def acc(i):
    if PROF:
        P('s_memtime s[98:99]')
        P('s_waitcnt lgkmcnt(0)')
        if i >= 0:
            P('s_sub_u32 s99, s98, s100')
            P(f's_add_u32 s{80 + i}, s{80 + i}, s99')
        else:
            for k in range(8): P(f's_mov_b32 s{80 + k}, 0')
        P('s_mov_b32 s100, s98')

R = 256
BS = 8320
LTOT = 8 * BS
RAW = 69632
STG = 4096
MA = 0
POSA = 20480
XT = 22528
XPITCH = 1040

def k2():
    kernel_begin('gather_scatter__cheap_equivariant_egnn__graph_kernel')
    P(f's_cmp_ge_u32 s2, {NT}')
    P('s_cbranch_scc1 K2_END')
    load_ptrs()
    acc(-1)
    P('s_setprio 3')
    P('v_and_b32 v1, 63, v0')
    P('v_lshrrev_b32 v2, 6, v0')
    P('s_nop 0')
    P('v_readfirstlane_b32 s60, v2')
    P(f's_mul_i32 s61, s2, {T}')
    P('s_waitcnt lgkmcnt(0)')
    srd(24, 20, 21, NCH * 1024, OFF_TBL)
    srd(28, 20, 21, E * 16, OFF_REC)
    srd(32, 20, 21, N * 512, OFF_B)
    srd(36, 20, 21, N * 512, OFF_A)
    srd(40, 4, 5, N * 512)
    srd(44, 22, 23, 5180000)
    srd(48, 20, 21, 256 * 1024, OFF_WHT)
    srd(52, 6, 7, N * 6)
    srd(56, 14, 15, 514 * 512)
    srd(64, 16, 17, 512)
    P('s_and_b32 s62, s60, 3')
    P('s_lshr_b32 s63, s60, 2')
    P(f'v_cmp_gt_u32 vcc, {NCH}, v0')
    P('s_and_saveexec_b64 s[68:69], vcc')
    P('v_lshlrev_b32 v3, 10, v0')
    P('s_lshl_b32 s70, s2, 1')
    P('buffer_load_ushort v120, v3, s[24:27], s70 offen')
    P('buffer_load_ushort v121, v3, s[24:27], s70 offen offset:2')
    P('s_mov_b64 exec, s[68:69]')
    P('v_lshlrev_b32 v3, 4, v0')
    P('s_lshl_b32 s70, s61, 9')
    P('buffer_load_dwordx4 v[96:99], v3, s[36:39], s70 offen')
    P('v_cmp_gt_u32 vcc, 128, v0')
    P('s_and_saveexec_b64 s[68:69], vcc')
    P('buffer_load_dwordx4 v[100:103], v3, s[36:39], s70 offen offset:8192')
    g.lines.pop(); g.hist.pop()
    P('s_add_u32 s71, s70, 8192')
    P('buffer_load_dwordx4 v[100:103], v3, s[36:39], s71 offen')
    P('v_lshrrev_b32 v4, 6, v0')
    P('v_sub_u32 v4, 513, v4')
    P('v_lshlrev_b32 v4, 9, v4')
    P('v_lshl_add_u32 v4, v1, 3, v4')
    P('buffer_load_dwordx2 v[104:105], v4, s[56:59], 0 offen')
    P('s_mov_b64 exec, s[68:69]')
    P('v_and_b32 v5, 15, v1')
    P('v_lshlrev_b32 v5, 3, v5')
    P('s_lshl_b32 s72, s62, 7')
    P('buffer_load_dwordx2 v[106:107], v5, s[64:67], s72 offen')
    for r in range(4): P(f'v_mov_b32 v{108 + r}, 0')
    P(f'v_mov_b32 v6, {LTOT}')
    P('ds_write_b32 v6, v108')
    P('v_cmp_gt_u32 vcc, 320, v0')
    P('s_and_saveexec_b64 s[68:69], vcc')
    P(f'ds_write_b128 v3, v[108:111] offset:{STG + 22 * 512}')
    P('s_mov_b64 exec, s[68:69]')
    P('s_waitcnt vmcnt(0)')
    P(f'ds_write_b128 v3, v[96:99] offset:{STG}')
    P('v_cmp_gt_u32 vcc, 128, v0')
    P('s_and_saveexec_b64 s[68:69], vcc')
    P(f'ds_write_b128 v3, v[100:103] offset:{STG + 8192}')
    P(f's_mov_b32 s70, {NEG_LOG2E}')
    P('v_lshlrev_b32 v108, 16, v104')
    P('v_and_b32 v109, 0xffff0000, v104')
    P('v_lshlrev_b32 v110, 16, v105')
    P('v_and_b32 v111, 0xffff0000, v105')
    for r in range(4): P(f'v_mul_f32 v{108 + r}, s70, v{108 + r}')
    P('v_cvt_pk_bf16_f32 v108, v108, v109')
    P('v_cvt_pk_bf16_f32 v109, v110, v111')
    P('v_lshlrev_b32 v4, 3, v0')
    P(f'ds_write_b64 v4, v[108:109] offset:{STG + 20 * 512}')
    P('s_mov_b64 exec, s[68:69]')
    P(f's_mov_b32 s70, {NEG_LN2}')
    P('v_lshlrev_b32 v10, 16, v106')
    P('v_and_b32 v11, 0xffff0000, v106')
    P('v_lshlrev_b32 v12, 16, v107')
    P('v_and_b32 v13, 0xffff0000, v107')
    for r in range(4): P(f'v_mul_f32 v{10 + r}, s70, v{10 + r}')
    P('s_waitcnt lgkmcnt(0)')
    P('s_barrier')
    P(f'v_cmp_gt_u32 vcc, {NCH}, v0')
    P('s_and_saveexec_b64 s[68:69], vcc')
    P('v_sub_u32 v122, v121, v120')
    P(f'v_mov_b32 v3, {LTOT}')
    P('ds_add_rtn_u32 v123, v3, v122')
    P('v_lshl_add_u32 v120, v0, 10, v120')
    P('v_lshlrev_b32 v120, 4, v120')
    P('v_mov_b32 v121, v122')
    P('v_lshlrev_b32 v3, 4, v0')
    P(f'v_add_u32 v3, {LTOT + 16}, v3')
    P('s_waitcnt lgkmcnt(0)')
    P('v_mov_b32 v122, v123')
    P('ds_write_b96 v3, v[120:122]')
    P('s_mov_b64 exec, s[68:69]')
    P('v_lshrrev_b32 v2, 4, v1')
    P('v_lshlrev_b32 v3, 12, v2')
    P('v_add_u32 v3, v3, v5')
    P('v_add_u32 v3, s72, v3')
    for s in range(8):
        P(f'ds_read_b64 v[{96 + 2 * s}:{97 + 2 * s}], v3 offset:{STG + s * 512}')
    P('s_mov_b32 s70, 0x05040100')
    P('s_mov_b32 s71, 0x07060302')
    P('s_waitcnt lgkmcnt(0)')
    for j in range(4):
        for sp in range(4):
            lo = 96 + 4 * sp + (j >> 1); hi = lo + 2
            P(f'v_perm_b32 v{16 + 4 * j + sp}, v{hi}, v{lo}, s{70 + (j & 1)}')
    for r in range(32, 80): P(f'v_mov_b32 v{r}, 0')
    P('v_mov_b32 v1, v5')
    P('s_barrier')
    P(f'v_mov_b32 v3, {LTOT}')
    P('ds_read_b32 v4, v3')
    P('s_waitcnt lgkmcnt(0)')
    P('v_readfirstlane_b32 s66, v4')
    P('s_mov_b32 s67, 0')
    acc(0)
    g.label('K2_ROUND')
    g.fence()
    for r in range(4): P(f'v_mov_b32 v{96 + r}, 0')
    P('v_lshlrev_b32 v3, 4, v0')
    for k in range(8):
        P(f'ds_write_b128 v3, v[96:99] offset:{k * 8192}')
    P('v_cmp_gt_u32 vcc, 64, v0')
    P('s_and_saveexec_b64 s[68:69], vcc')
    P('v_add_u32 v4, 32768, v3')
    P('ds_write_b128 v4, v[96:99] offset:32768')
    P('s_mov_b64 exec, s[68:69]')
    P('s_waitcnt lgkmcnt(0)')
    P('s_barrier')
    acc(1)
    P('s_cmp_ge_u32 s60, 3')
    P('s_cbranch_scc1 K2_GDONE')
    P(f'v_cmp_gt_u32 vcc, {NCH}, v0')
    P('s_and_saveexec_b64 s[68:69], vcc')
    P('v_lshlrev_b32 v3, 4, v0')
    P(f'v_add_u32 v3, {LTOT + 16}, v3')
    P('ds_read_b96 v[120:122], v3')
    P('s_waitcnt lgkmcnt(0)')
    P('v_mov_b32 v123, v122')
    P('v_mov_b32 v122, v121')
    P('v_max_u32 v96, s67, v123')
    P('v_add_u32 v97, v123, v122')
    P(f's_add_u32 s70, s67, {R}')
    P('v_min_u32 v97, s70, v97')
    P('v_sub_u32 v98, v96, v123')
    P('v_lshl_add_u32 v98, v98, 4, v120')
    P('v_subrev_u32 v96, s67, v96')
    P('v_subrev_u32 v97, s67, v97')
    P('s_mov_b32 s74, 0x3f80')
    g.label('K2_GLOOP')
    g.fence()
    P('v_cmp_lt_i32 vcc, v96, v97')
    P('s_and_b64 exec, exec, vcc')
    P('s_cbranch_execz K2_GEND')
    P('s_mov_b64 s[76:77], exec')
    for q in range(4):
        P(f'v_add_u32 v99, {q}, v96')
        P('v_cmp_lt_i32 vcc, v99, v97')
        P('s_and_b64 exec, exec, vcc')
        P(f'buffer_load_dwordx4 v[{80 + 4 * q}:{83 + 4 * q}], v98, s[28:31], 0 offen offset:{16 * q}')
    P('s_mov_b64 exec, s[76:77]')
    acc(7)
    P('s_waitcnt vmcnt(0)')
    acc(6)
    for q in range(4):
        P('v_cmp_lt_i32 vcc, v96, v97')
        P('s_and_b64 exec, exec, vcc')
        P('v_lshlrev_b32 v99, 4, v96')
        P(f'v_add_u32 v99, {RAW}, v99')
        P(f'ds_write_b128 v99, v[{80 + 4 * q}:{83 + 4 * q}]')
        P('v_add_u32 v96, 1, v96')
    P('s_mov_b64 exec, s[76:77]')
    P('v_add_u32 v98, 64, v98')
    P('s_branch K2_GLOOP')
    g.label('K2_GEND')
    P('s_mov_b64 exec, s[68:69]')
    g.label('K2_GDONE')
    g.fence()
    P('s_waitcnt lgkmcnt(0)')
    P('s_barrier')
    P('s_sub_u32 s70, s66, s67')
    P(f's_min_u32 s70, s70, {R}')
    P('s_mov_b32 s74, 0x3f80')
    P('v_cmp_gt_u32 vcc, s70, v0')
    P('s_and_saveexec_b64 s[68:69], vcc')
    P('v_mov_b32 v96, v0')
    P('v_lshlrev_b32 v99, 4, v96')
    P(f'v_add_u32 v99, {RAW}, v99')
    P('ds_read_b128 v[80:83], v99')
    for q in range(1):
        P('s_waitcnt lgkmcnt(0)')
        P('v_lshrrev_b32 v104, 5, v96')
        P(f'v_mul_u32_u24 v104, {BS}, v104')
        P('v_and_b32 v105, 31, v96')
        P('v_bfe_u32 v106, v96, 2, 2')
        P('v_bfe_u32 v107, v96, 4, 1')
        P('v_lshlrev_b32 v107, 3, v107')
        P('v_and_b32 v108, 3, v96')
        P('v_lshl_add_u32 v107, v108, 1, v107')
        P('v_add_u32 v107, v107, v104')
        P('v_lshl_add_u32 v108, v105, 6, v104')
        P('v_lshl_add_u32 v109, v105, 2, v104')
        P('v_xor_b32 v110, 2, v106')
        P('v_lshl_add_u32 v110, v110, 4, v108')
        P(f'ds_write_b32 v110, v{80 + 4 * q + 1} offset:8')
        P(f'v_lshrrev_b32 v111, 16, v{80 + 4 * q + 0}')
        P(f'v_and_b32 v112, 0xffff, v{80 + 4 * q + 0}')
        P('v_lshlrev_b32 v112, 9, v112')
        P('ds_write_b32 v109, v112 offset:8192')
        P('v_lshrrev_b32 v112, 3, v111')
        P('v_xor_b32 v112, v112, v106')
        P('v_lshl_add_u32 v112, v112, 4, v108')
        P('v_and_b32 v113, 7, v111')
        P('v_lshl_add_u32 v112, v113, 1, v112')
        P('v_mov_b32 v114, s74')
        P('ds_write_b16 v112, v114')
        for k in range(4):
            if k == 0: P('v_mov_b32 v112, v111')
            else: P(f'v_add_u32 v112, {(k - 1) * T}, v111')
            P('v_bfe_u32 v113, v112, 2, 2')
            P('v_xor_b32 v113, v113, v106')
            P('v_lshlrev_b32 v113, 4, v113')
            P('v_lshl_add_u32 v113, v112, 6, v113')
            P('v_add_u32 v113, v113, v107')
            if k == 0: P('ds_write_b16 v113, v114 offset:2048')
            elif k == 1: P(f'ds_write_b16 v113, v{80 + 4 * q + 2} offset:4096')
            elif k == 2: P(f'ds_write_b16_d16_hi v113, v{80 + 4 * q + 2} offset:4096')
            else: P(f'ds_write_b16 v113, v{80 + 4 * q + 3} offset:4096')
    P('s_mov_b64 exec, s[68:69]')
    P('s_waitcnt lgkmcnt(0)')
    P('s_barrier')
    acc(2)
    P('s_setprio 0')
    P('s_sub_u32 s70, s66, s67')
    P(f's_min_u32 s70, s70, {R}')
    P('s_add_u32 s70, s70, 31')
    P('s_lshr_b32 s71, s70, 5')
    P('s_mov_b32 s70, s63')
    P('s_cmp_ge_u32 s70, s71')
    P('s_cbranch_scc1 K2_CDONE')
    P('v_and_b32 v4, 15, v0')
    P('v_bfe_u32 v2, v0, 4, 2')
    P('v_bfe_u32 v6, v0, 2, 2')
    P('v_xor_b32 v6, v6, v2')
    P('v_lshlrev_b32 v6, 4, v6')
    P('v_lshl_add_u32 v6, v4, 6, v6')
    P(f's_mul_i32 s73, s63, {BS}')
    P('v_add_u32 v14, s73, v6')
    P('v_lshlrev_b32 v7, 4, v2')
    P(f's_add_u32 s73, s73, 8192')
    P('v_add_u32 v15, s73, v7')
    def prefetch():
        P('ds_read_b128 v[88:91], v15')
        P('ds_read_b128 v[92:95], v15 offset:64')
        P('s_waitcnt lgkmcnt(0)')
        for r in range(8): P(f'v_add_u32 v{88 + r}, v{88 + r}, v1')
        for r in range(8):
            P(f'buffer_load_dwordx2 v[{80 + 2 * r}:{81 + 2 * r}], v{88 + r}, s[32:35], s72 offen')
        P(f'v_add_u32 v15, {2 * BS}, v15')
    prefetch()
    g.label('K2_BLK')
    g.fence()
    P('ds_read_b128 v[2:5], v14')
    P('ds_read_b128 v[6:9], v14 offset:1024')
    P('s_waitcnt vmcnt(0)')
    for t in range(2):
        for r in range(4):
            gsrc = 80 + 8 * t + 2 * r
            z = 96 + 16 * t + r
            P(f'v_lshlrev_b32 v{z}, 16, v{gsrc}')
            P(f'v_and_b32 v{z + 4}, 0xffff0000, v{gsrc}')
            P(f'v_lshlrev_b32 v{z + 8}, 16, v{gsrc + 1}')
            P(f'v_and_b32 v{z + 12}, 0xffff0000, v{gsrc + 1}')
    P('s_add_u32 s70, s70, 2')
    P('s_cmp_ge_u32 s70, s71')
    P('s_cbranch_scc1 K2_NOPF')
    prefetch()
    g.label('K2_NOPF')
    g.fence()
    P('s_waitcnt lgkmcnt(0)')
    for t in range(2):
        for j in range(4):
            z = 96 + 16 * t + 4 * j
            P(f'v_mfma_f32_16x16x32_bf16 v[{z}:{z + 3}], v[{2 + 4 * t}:{5 + 4 * t}], v[{16 + 4 * j}:{19 + 4 * j}], v[{z}:{z + 3}]')
    for q in range(4):
        zb = 96 + 8 * q
        for r in range(8): P(f'v_exp_f32 v{2 + r}, v{zb + r}')
        for r in range(0, 8, 2): P(f'v_pk_add_f32 v[{2 + r}:{3 + r}], v[{2 + r}:{3 + r}], 1.0 op_sel_hi:[1,0]')
        for r in range(8): P(f'v_rcp_f32 v{2 + r}, v{2 + r}')
        for r in range(0, 8, 2): P(f'v_pk_mul_f32 v[{zb + r}:{zb + r + 1}], v[{zb + r}:{zb + r + 1}], v[{2 + r}:{3 + r}]')
    for t in range(2):
        for p in range(2):
            d = 2 + 4 * t + 2 * p
            for j in range(4):
                z = 96 + 16 * t + 4 * j + 2 * p
                w = 10 + (j & 2); sel = j & 1
                if j == 0:
                    P(f'v_pk_mul_f32 v[{d}:{d + 1}], v[{z}:{z + 1}], v[{w}:{w + 1}] op_sel:[0,{sel}] op_sel_hi:[1,{sel}]')
                else:
                    P(f'v_pk_fma_f32 v[{d}:{d + 1}], v[{z}:{z + 1}], v[{w}:{w + 1}], v[{d}:{d + 1}] op_sel:[0,{sel},0] op_sel_hi:[1,{sel},1]')
    for j in range(4):
        a = 96 + 4 * j; b = 112 + 4 * j
        P(f'v_cvt_pk_bf16_f32 v{a}, v{a}, v{a + 1}')
        P(f'v_cvt_pk_bf16_f32 v{a + 1}, v{a + 2}, v{a + 3}')
        P(f'v_cvt_pk_bf16_f32 v{a + 2}, v{b}, v{b + 1}')
        P(f'v_cvt_pk_bf16_f32 v{a + 3}, v{b + 2}, v{b + 3}')
    for k in range(4):
        P(f'v_cvt_pk_bf16_f32 v{112 + k}, v{2 + 2 * k}, v{3 + 2 * k}')
    P('ds_read_b128 v[116:119], v14 offset:2048')
    P('ds_read_b128 v[120:123], v14 offset:3072') if False else None
    P('ds_read_b128 v[124:127], v14 offset:3072')
    P('ds_read_b128 v[2:5], v14 offset:4096')
    P('ds_read_b128 v[6:9], v14 offset:5120')
    for rt, reg, w in ((0, 116, 3), (1, 124, 2)):
        P(f's_waitcnt lgkmcnt({w})')
        for j in range(4):
            m = 32 + 16 * rt + 4 * j
            P(f'v_mfma_f32_16x16x32_bf16 v[{m}:{m + 3}], v[{reg}:{reg + 3}], v[{96 + 4 * j}:{99 + 4 * j}], v[{m}:{m + 3}]')
    P('ds_read_b128 v[116:119], v14 offset:6144')
    P('ds_read_b128 v[124:127], v14 offset:7168')
    for rt, reg, w in ((0, 2, 3), (1, 6, 2), (2, 116, 1), (3, 124, 0)):
        P(f's_waitcnt lgkmcnt({w})')
        m = 64 + 4 * rt
        P(f'v_mfma_f32_16x16x32_bf16 v[{m}:{m + 3}], v[{reg}:{reg + 3}], v[112:115], v[{m}:{m + 3}]')
    P(f'v_add_u32 v14, {2 * BS}, v14')
    P('s_cmp_lt_u32 s70, s71')
    P('s_cbranch_scc1 K2_BLK')
    g.label('K2_CDONE')
    g.fence()
    P('s_waitcnt vmcnt(0) lgkmcnt(0)')
    acc(3)
    P('s_setprio 3')
    P('s_barrier')
    acc(4)
    P(f's_add_u32 s67, s67, {R}')
    P('s_cmp_lt_u32 s67, s66')
    P('s_cbranch_scc1 K2_ROUND')
    P('s_nop 7'); P('s_nop 7')
    for r in range(4): P(f'v_mov_b32 v{96 + r}, 0')
    P('v_lshlrev_b32 v3, 4, v0')
    for k in range(7):
        P(f'ds_write_b128 v3, v[96:99] offset:{k * 8192}')
    P('v_and_b32 v1, 63, v0')
    P('v_and_b32 v2, 15, v1')
    P('v_lshrrev_b32 v3, 4, v1')
    P('v_lshlrev_b32 v4, 4, v0')
    P('s_lshl_b32 s70, s61, 9')
    P('buffer_load_dwordx4 v[112:115], v4, s[40:43], s70 offen')
    P('s_add_u32 s71, s70, 8192')
    P('v_cmp_gt_u32 vcc, 128, v0')
    P('s_and_saveexec_b64 s[68:69], vcc')
    P('buffer_load_dwordx4 v[116:119], v4, s[40:43], s71 offen')
    P('s_mov_b64 exec, s[68:69]')
    P(f's_mov_b32 s70, {NEG_LN2}')
    for r in range(32, 64): P(f'v_mul_f32 v{r}, s70, v{r}')
    for r in range(64, 80):
        for sh in (1, 2, 4, 8):
            P(f'v_add_f32_dpp v{r}, v{r}, v{r} row_shr:{sh} row_mask:0xf bank_mask:0xf bound_ctrl:0')
    P('s_waitcnt lgkmcnt(0)')
    P('s_barrier')
    P('v_lshlrev_b32 v5, 12, v3')
    P('v_lshl_add_u32 v5, v2, 4, v5')
    P('s_lshl_b32 s70, s62, 8')
    P('v_add_u32 v5, s70, v5')
    P('s_mov_b32 exec_lo, 0x80008000'); P('s_mov_b32 exec_hi, 0x80008000')
    P('v_lshlrev_b32 v6, 4, v3')
    P('s_lshl_b32 s70, s60, 8')
    P('v_add_u32 v6, s70, v6')
    for rt in range(4):
        P(f'ds_write_b128 v6, v[{64 + 4 * rt}:{67 + 4 * rt}] offset:{POSA + 16 * rt * 4}')
    P('s_mov_b64 exec, -1')
    P('s_cmp_lg_u32 s63, 0')
    P('s_cbranch_scc1 K2_H1')
    for r in range(4):
        P(f'v_mov_b32 v96, v{32 + r}'); P(f'v_mov_b32 v97, v{36 + r}'); P(f'v_mov_b32 v98, v{40 + r}'); P(f'v_mov_b32 v99, v{44 + r}')
        P(f'ds_write_b128 v5, v[96:99] offset:{MA + r * 1024}')
        P('s_nop 1')
    P('s_mov_b64 exec, 0xffff')
    for r in range(4):
        P(f'v_mov_b32 v96, v{48 + r}'); P(f'v_mov_b32 v97, v{52 + r}'); P(f'v_mov_b32 v98, v{56 + r}'); P(f'v_mov_b32 v99, v{60 + r}')
        P(f'ds_write_b128 v5, v[96:99] offset:{MA + (16 + r) * 1024}')
        P('s_nop 1')
    P('s_mov_b64 exec, -1')
    P('s_waitcnt lgkmcnt(0)')
    P('s_barrier')
    P('s_branch K2_HD')
    g.label('K2_H1')
    g.fence()
    P('s_waitcnt lgkmcnt(0)')
    P('s_barrier')
    for rt in range(2):
        if rt: P('s_mov_b64 exec, 0xffff')
        for r in range(4):
            P(f'ds_read_b128 v[{96 + 4 * r}:{99 + 4 * r}], v5 offset:{MA + (16 * rt + r) * 1024}')
        P('s_waitcnt lgkmcnt(0)')
        for r in range(4):
            for j in range(4):
                P(f'v_add_f32 v{96 + 4 * r + j}, v{96 + 4 * r + j}, v{32 + 16 * rt + 4 * j + r}')
        for r in range(4):
            P(f'ds_write_b128 v5, v[{96 + 4 * r}:{99 + 4 * r}] offset:{MA + (16 * rt + r) * 1024}')
        P('s_nop 1')
    P('s_mov_b64 exec, -1')
    g.label('K2_HD')
    g.fence()
    P('s_lshl_b32 s70, s60, 5')
    P('v_add_u32 v4, s70, v2')
    P('v_lshlrev_b32 v4, 10, v4')
    P('v_lshl_add_u32 v4, v3, 4, v4')
    for ks in range(16):
        P(f'buffer_load_dwordx4 v[{16 + 4 * ks}:{19 + 4 * ks}], v4, s[48:51], 0 offen offset:{ks * 64}')
    P('s_waitcnt lgkmcnt(0)')
    P('s_barrier')
    P('v_lshrrev_b32 v5, 5, v0')
    P('v_and_b32 v6, 31, v0')
    P(f'v_mul_u32_u24 v7, {XPITCH}, v5')
    P('v_lshl_add_u32 v7, v6, 4, v7')
    P(f'v_add_u32 v7, {XT}, v7')
    P('s_waitcnt vmcnt(16)')
    P('ds_write_b128 v7, v[112:115]')
    P('v_cmp_gt_u32 vcc, 128, v0')
    P('s_and_saveexec_b64 s[68:69], vcc')
    P(f'ds_write_b128 v7, v[116:119] offset:{16 * XPITCH}')
    P('s_mov_b64 exec, s[68:69]')
    for hh in range(2):
        if hh:
            P('v_cmp_gt_u32 vcc, 128, v0')
            P('s_and_saveexec_b64 s[68:69], vcc')
        P('v_lshlrev_b32 v8, 10, v5')
        P('v_lshl_add_u32 v8, v6, 5, v8')
        P(f'ds_read_b128 v[96:99], v8 offset:{MA + hh * 16384}')
        P(f'ds_read_b128 v[100:103], v8 offset:{MA + hh * 16384 + 16}')
        P('s_waitcnt lgkmcnt(0)')
        P('v_cvt_pk_bf16_f32 v104, v96, v97')
        P('v_cvt_pk_bf16_f32 v105, v98, v99')
        P('v_cvt_pk_bf16_f32 v106, v100, v101')
        P('v_cvt_pk_bf16_f32 v107, v102, v103')
        P(f'ds_write_b128 v7, v[104:107] offset:{512 + hh * 16 * XPITCH}')
        if hh: P('s_mov_b64 exec, s[68:69]')
    P(f'v_cmp_gt_u32 vcc, {3 * T}, v0')
    P('s_and_saveexec_b64 s[68:69], vcc')
    P('s_mov_b32 s70, 0x0CCCCCCD')
    P('v_mul_hi_u32 v9, s70, v0')
    P(f'v_mul_u32_u24 v8, {T}, v9')
    P('v_sub_u32 v8, v0, v8')
    P('v_lshlrev_b32 v10, 2, v0')
    for w_ in range(8):
        P(f'ds_read_b32 v{100 + w_}, v10 offset:{POSA + w_ * 256}')
    P('v_add_u32 v12, s61, v8')
    P('v_mul_u32_u24 v12, 6, v12')
    P('v_lshl_add_u32 v12, v9, 1, v12')
    P('buffer_load_ushort v13, v12, s[52:55], 0 offen')
    P('s_waitcnt vmcnt(0) lgkmcnt(0)')
    for w_ in range(1, 8):
        P(f'v_add_f32 v100, v100, v{100 + w_}')
    P('v_mov_b32 v11, v100')
    P('v_lshlrev_b32 v13, 16, v13')
    P('v_add_f32 v13, v13, v11')
    P('v_cvt_pk_bf16_f32 v13, v13, v13')
    P('s_mov_b32 s70, 5120000')
    P('buffer_store_short v13, v12, s[44:47], s70 offen')
    P('s_mov_b64 exec, s[68:69]')
    P('s_waitcnt lgkmcnt(0)')
    P('s_barrier')
    P(f'v_mul_u32_u24 v5, {XPITCH}, v2')
    P('v_lshl_add_u32 v5, v3, 4, v5')
    P(f'v_add_u32 v5, {XT}, v5')
    for half in range(2):
        P('s_waitcnt vmcnt(0)')
        for nt in range(2):
            for ks in range(16):
                P(f'ds_read_b128 v[{96 + 4 * (ks % 4)}:{99 + 4 * (ks % 4)}], v5 offset:{nt * 16 * XPITCH + ks * 64}')
                if ks % 4 == 3:
                    for kk in range(4):
                        kq = ks - 3 + kk
                        P(f's_waitcnt lgkmcnt({3 - kk})')
                        c = '0' if kq == 0 else f'v[{80 + 4 * nt}:{83 + 4 * nt}]'
                        P(f'v_mfma_f32_16x16x32_bf16 v[{80 + 4 * nt}:{83 + 4 * nt}], v[{16 + 4 * kq}:{19 + 4 * kq}], v[{96 + 4 * kk}:{99 + 4 * kk}], {c}')
        if half == 0:
            P('s_nop 7')
            for ks in range(16):
                P(f'buffer_load_dwordx4 v[{16 + 4 * ks}:{19 + 4 * ks}], v4, s[48:51], 0 offen offset:{16384 + ks * 64}') if False else None
            P('v_add_u32 v4, 16384, v4')
            for ks in range(16):
                P(f'buffer_load_dwordx4 v[{16 + 4 * ks}:{19 + 4 * ks}], v4, s[48:51], 0 offen offset:{ks * 64}')
        P('s_mov_b32 s70, 0xbfb8aa3b')
        P('s_lshl_b32 s71, s60, 6')
        P(f's_add_u32 s71, s71, {half * 32}')
        P('v_lshlrev_b32 v6, 3, v3')
        P('v_add_u32 v6, s71, v6')
        for nt in range(2):
            P(f'v_add_u32 v7, {16 * nt}, v2')
            P(f'v_mul_u32_u24 v8, {XPITCH}, v7')
            P('v_add_u32 v8, v8, v6')
            P(f'ds_read_b64 v[10:11], v8 offset:{XT}')
            for r in range(4): P(f'v_mul_f32 v{96 + r}, s70, v{80 + 4 * nt + r}')
            for r in range(4): P(f'v_exp_f32 v{96 + r}, v{96 + r}')
            for r in range(4): P(f'v_add_f32 v{96 + r}, 1.0, v{96 + r}')
            for r in range(4): P(f'v_rcp_f32 v{96 + r}, v{96 + r}')
            for r in range(4): P(f'v_mul_f32 v{96 + r}, v{96 + r}, v{80 + 4 * nt + r}')
            P('s_waitcnt lgkmcnt(0)')
            P('v_lshlrev_b32 v100, 16, v10')
            P('v_and_b32 v101, 0xffff0000, v10')
            P('v_lshlrev_b32 v102, 16, v11')
            P('v_and_b32 v103, 0xffff0000, v11')
            for r in range(4): P(f'v_add_f32 v{96 + r}, v{96 + r}, v{100 + r}')
            P('v_cvt_pk_bf16_f32 v104, v96, v97')
            P('v_cvt_pk_bf16_f32 v105, v98, v99')
            P('v_add_u32 v9, s61, v7')
            P('v_lshlrev_b32 v9, 9, v9')
            P('v_add_u32 v9, v9, v6')
            P(f'v_cmp_gt_u32 vcc, {T}, v7')
            P('s_and_saveexec_b64 s[68:69], vcc')
            P('buffer_store_dwordx2 v[104:105], v9, s[44:47], 0 offen')
            P('s_mov_b64 exec, s[68:69]')
    acc(5)
    if PROF:
        srd(64, 20, 21, 0x1000000, 0x3000000)
        for k in range(8): P(f'v_mov_b32 v{2 + k}, s{80 + k}')
        P('s_lshl_b32 s70, s2, 8')
        P('s_lshl_b32 s71, s60, 5')
        P('s_add_u32 s70, s70, s71')
        P('v_mov_b32 v1, 0')
        P('s_mov_b64 exec, 1')
        P('buffer_store_dwordx4 v[2:5], v1, s[64:67], s70 offen')
        P('buffer_store_dwordx4 v[6:9], v1, s[64:67], s70 offen offset:16')
    g.label('K2_END')
    P('s_endpgm')

if __name__ == '__main__':
    header()
    k1()
    k2()
    kernel_desc('egnn_prep_kernel', 112)
    kernel_desc('gather_scatter__cheap_equivariant_egnn__graph_kernel', 128)
    out = sys.argv[1] if len(sys.argv) > 1 else 'k2.s'
    open(out, 'w').write(g.text())
```

```python
import sys
from asmgen import Gen

N = 10000
E = 160000
D = 256
T = 20
NT = 500
CH = 1024
NCH = 157

OFF_B = 0x0000000
OFF_A = 0x0800000
OFF_TBL = 0x1400000
OFF_REC = 0x1500000
OFF_WHT = 0x1800000

NEG_LOG2E = '0xbfb8aa3b'
NEG_LN2 = '0xbf317218'

LDSK2 = 76800
K1_GEMM = 628
K1_SORT = K1_GEMM + NCH
K1_TR = K1_SORT + 16

g = Gen()
import os
EXP = os.environ.get('EXP','')
DEBUG = len(sys.argv) > 2 and sys.argv[2] == 'dbg'
PROF = len(sys.argv) > 2 and sys.argv[2] == 'prof'
def stamp(i, vreg=126):
    if PROF:
        P('s_memtime s[100:101]')
        P('s_waitcnt lgkmcnt(0)')
        P(f'v_writelane_b32 v{vreg}, s100, {i}')
def prof_store(base, waves_per_wg, vreg=126):
    if PROF:
        srd(64, 20, 21, 0x1000000, base)
        P('v_and_b32 v125, 63, v0')
        P('v_lshlrev_b32 v125, 2, v125')
        P('v_lshrrev_b32 v124, 6, v0')
        P('v_lshlrev_b32 v124, 8, v124')
        P('v_add_u32 v125, v124, v125')
        P(f's_mul_i32 s100, s2, {waves_per_wg * 256}')
        P(f'buffer_store_dword v{vreg}, v125, s[64:67], s100 offen')
P = g

def srd(d, lo, hi, nbytes, off=0):
    if off:
        P(f's_add_u32 s{d}, s{lo}, {off}')
        P(f's_addc_u32 s{d+1}, s{hi}, 0')
        P(f's_and_b32 s{d+1}, s{d+1}, 0xffff')
    else:
        P(f's_mov_b32 s{d}, s{lo}')
        P(f's_and_b32 s{d+1}, s{hi}, 0xffff')
    P(f's_mov_b32 s{d+2}, {nbytes}')
    P(f's_mov_b32 s{d+3}, 0x00020000')

def header():
    g.raw(('''; EGNN layer: K1 (node GEMMs A'=h@W1, B'=h@W2, per-chunk edge bucketing, w_h transpose) then K2 (edge phase + node update)
; @launch kernel=egnn_prep_kernel grid=(%d,1,1) block=(256,1,1) lds=69632
; @launch kernel=gather_scatter__cheap_equivariant_egnn__graph_kernel grid=(%d,1,1) block=(512,1,1) lds=LDSK2
.amdgcn_target "amdgcn-amd-amdhsa--gfx950"
.text''').replace('LDSK2',str(LDSK2)) % (K1_TR, NT))

def kernel_begin(name):
    g.raw(f'.globl {name}\n.p2align 8\n.type {name},@function\n{name}:')
    g.fence()

def kernel_desc(name, vgpr, sgpr=102):
    acc = (vgpr + 3) // 4 * 4
    g.raw(f'''.section .rodata,"a"
.p2align 6
.amdhsa_kernel {name}
  .amdhsa_next_free_vgpr {vgpr}
  .amdhsa_next_free_sgpr {sgpr}
  .amdhsa_accum_offset {acc}
  .amdhsa_group_segment_fixed_size 0
  .amdhsa_kernarg_size 88
  .amdhsa_user_sgpr_count 2
  .amdhsa_user_sgpr_kernarg_segment_ptr 1
  .amdhsa_system_sgpr_workgroup_id_x 1
.end_amdhsa_kernel
.text''')

def load_ptrs():
    P('s_load_dwordx16 s[4:19], s[0:1], 0')
    P('s_load_dwordx2 s[20:21], s[0:1], 80')
    P('s_load_dwordx2 s[22:23], s[0:1], 64')

def k1():
    kernel_begin('egnn_prep_kernel')
    load_ptrs()
    P(f's_cmp_ge_u32 s2, {K1_GEMM}')
    P('s_cbranch_scc1 K1_NOTGEMM')
    P('s_waitcnt lgkmcnt(0)')
    srd(24, 14, 15, 514 * 512)
    srd(28, 4, 5, N * 512)
    P('s_and_b32 s40, s2, 3')
    P('s_lshr_b32 s41, s2, 2')
    P('s_lshr_b32 s42, s40, 1')
    P('s_lshl_b32 s42, s42, 17')
    P('s_and_b32 s43, s40, 1')
    P('s_lshl_b32 s44, s43, 8')
    P('s_add_u32 s42, s42, s44')
    P('v_lshrrev_b32 v1, 4, v0')
    P('v_and_b32 v2, 15, v0')
    P('v_lshlrev_b32 v3, 9, v1')
    P('v_lshl_add_u32 v3, v2, 4, v3')
    for i in range(16):
        P(f's_add_u32 s45, s42, {i * 8192}')
        P(f'buffer_load_dwordx4 v[{8 + 4 * i}:{11 + 4 * i}], v3, s[24:27], s45 offen')
    P('v_and_b32 v4, 63, v0')
    P('v_lshrrev_b32 v5, 6, v0')
    P('s_lshl_b32 s46, s41, 6')
    P('v_lshlrev_b32 v5, 4, v5')
    P('v_add_u32 v5, s46, v5')
    P('v_and_b32 v6, 15, v4')
    P('v_add_u32 v5, v5, v6')
    P('v_lshrrev_b32 v6, 4, v4')
    P('v_lshlrev_b32 v7, 9, v5')
    P('v_lshl_add_u32 v7, v6, 4, v7')
    for ks in range(8):
        P(f'buffer_load_dwordx4 v[{72 + 4 * ks}:{75 + 4 * ks}], v7, s[28:31], 0 offen offset:{ks * 64}')
    P('v_mul_u32_u24 v104, 272, v1')
    P('v_lshl_add_u32 v104, v2, 4, v104')
    for i in range(16):
        P(f's_waitcnt vmcnt({8 + 15 - i})')
        P(f'ds_write_b128 v104, v[{8 + 4 * i}:{11 + 4 * i}] offset:{i * 4352}')
    srd(32, 20, 21, N * 512, OFF_A)
    srd(36, 20, 21, N * 512, OFF_B)
    P('v_bfe_u32 v105, v4, 2, 2')
    P('v_lshl_add_u32 v105, v6, 3, v105')
    P('v_mul_u32_u24 v105, 272, v105')
    P('v_and_b32 v106, 3, v4')
    P('v_lshl_add_u32 v105, v106, 3, v105')
    P('v_lshlrev_b32 v106, 10, v5')
    P('v_lshl_add_u32 v106, v6, 4, v106')
    P('v_lshlrev_b32 v107, 9, v5')
    P('v_lshl_add_u32 v107, v6, 3, v107')
    P('s_lshl_b32 s47, s43, 9')
    P('s_lshl_b32 s48, s43, 8')
    P(f's_mov_b32 s49, {NEG_LOG2E}')
    P('s_waitcnt lgkmcnt(0)')
    P('s_barrier')
    P('s_waitcnt vmcnt(0)')
    for nt in range(8):
        for ks in range(8):
            P(f'ds_read_b64_tr_b16 v[{8 + 4 * ks}:{9 + 4 * ks}], v105 offset:{ks * 8704 + nt * 32}')
            P(f'ds_read_b64_tr_b16 v[{10 + 4 * ks}:{11 + 4 * ks}], v105 offset:{ks * 8704 + nt * 32 + 1088}')
        for ks in range(8):
            P(f's_waitcnt lgkmcnt({14 - 2 * ks})')
            c = '0' if ks == 0 else 'v[40:43]'
            P(f'v_mfma_f32_16x16x32_bf16 v[40:43], v[{8 + 4 * ks}:{11 + 4 * ks}], v[{72 + 4 * ks}:{75 + 4 * ks}], {c}')
        for r in range(4):
            P(f'v_mul_f32 v{44 + r}, s49, v{40 + r}')
        P('v_cvt_pk_bf16_f32 v48, v44, v45')
        P('v_cvt_pk_bf16_f32 v49, v46, v47')
        P('s_cmp_ge_u32 s40, 2')
        P(f's_cbranch_scc1 K1_STB{nt}')
        P(f'buffer_store_dwordx2 v[48:49], v107, s[32:35], s48 offen offset:{nt * 32}')
        P(f's_branch K1_STD{nt}')
        g.label(f'K1_STB{nt}')
        P(f'buffer_store_dwordx2 v[48:49], v107, s[36:39], s48 offen offset:{nt * 32}')
        g.label(f'K1_STD{nt}')
        P('s_nop 1')
    P('s_endpgm')

    g.label('K1_NOTGEMM')
    g.fence()
    P(f's_cmp_ge_u32 s2, {K1_SORT}')
    P('s_cbranch_scc1 K1_NOTSORT')
    P(f's_sub_u32 s40, s2, {K1_GEMM}')
    P('s_waitcnt lgkmcnt(0)')
    srd(24, 12, 13, E * 4)
    srd(28, 10, 11, E * 4)
    srd(32, 8, 9, E * 2)
    srd(36, 6, 7, N * 6)
    P('v_lshlrev_b32 v1, 2, v0')
    P('v_mov_b32 v2, 0')
    P('ds_write_b32 v1, v2')
    P('ds_write_b32 v1, v2 offset:1024')
    P('s_lshl_b32 s41, s40, 10')
    P('v_lshlrev_b32 v3, 2, v0')
    P('v_add_u32 v3, s41, v3')
    P(f'v_cmp_gt_u32 vcc, {E}, v3')
    P('s_and_saveexec_b64 s[42:43], vcc')
    P('v_lshlrev_b32 v1, 2, v3')
    P('buffer_load_dwordx4 v[4:7], v1, s[24:27], 0 offen')
    P('buffer_load_dwordx4 v[8:11], v1, s[28:31], 0 offen')
    P('v_lshlrev_b32 v1, 1, v3')
    P('buffer_load_dwordx2 v[12:13], v1, s[32:35], 0 offen')
    P('s_waitcnt lgkmcnt(0)')
    P('s_barrier')
    P('s_waitcnt vmcnt(0)')
    P('s_mov_b32 s44, 0x0CCCCCCD')
    for j in range(4):
        for (idx, dreg) in ((4 + j, 16 + 4 * j), (8 + j, 18 + 4 * j)):
            P(f'v_mul_u32_u24 v1, 6, v{idx}')
            P('v_and_b32 v1, -4, v1')
            P(f'buffer_load_dwordx2 v[{dreg}:{dreg + 1}], v1, s[36:39], 0 offen')
    for j in range(4):
        P(f'v_mul_hi_u32 v{32 + j}, s44, v{4 + j}')
        P(f'v_mul_u32_u24 v1, {T}, v{32 + j}')
        P(f'v_sub_u32 v{36 + j}, v{4 + j}, v1')
        P(f'v_lshlrev_b32 v1, 2, v{32 + j}')
        P('v_mov_b32 v2, 1')
        P(f'ds_add_rtn_u32 v{40 + j}, v1, v2')
    P('s_waitcnt vmcnt(0)')
    for j in range(4):
        pd = 16 + 4 * j; ps = 18 + 4 * j
        for (idx, r) in ((4 + j, pd), (8 + j, ps)):
            P(f'v_and_b32 v1, 1, v{idx}')
            P('v_lshlrev_b32 v1, 4, v1')
            P(f'v_lshrrev_b64 v[{r}:{r + 1}], v1, v[{r}:{r + 1}]')
        P(f'v_lshlrev_b32 v1, 16, v{pd}')
        P(f'v_lshlrev_b32 v2, 16, v{ps}')
        P('v_sub_f32 v44, v1, v2')
        P(f'v_and_b32 v1, 0xffff0000, v{pd}')
        P(f'v_and_b32 v2, 0xffff0000, v{ps}')
        P('v_sub_f32 v45, v1, v2')
        P(f'v_lshlrev_b32 v1, 16, v{pd + 1}')
        P(f'v_lshlrev_b32 v2, 16, v{ps + 1}')
        P('v_sub_f32 v46, v1, v2')
        P('v_cvt_pk_bf16_f32 v50, v44, v45')
        P('v_cvt_pk_bf16_f32 v51, v46, v46')
        P('v_and_b32 v51, 0xffff, v51')
        P('v_lshlrev_b32 v44, 16, v50')
        P('v_and_b32 v45, 0xffff0000, v50')
        P('v_lshlrev_b32 v46, 16, v51')
        P('v_mul_f32 v44, v44, v44')
        P('v_mul_f32 v45, v45, v45')
        P('v_mul_f32 v46, v46, v46')
        P('v_cvt_pk_bf16_f32 v47, v44, v45')
        P('v_cvt_pk_bf16_f32 v48, v46, v46')
        P('v_lshlrev_b32 v44, 16, v47')
        P('v_and_b32 v45, 0xffff0000, v47')
        P('v_lshlrev_b32 v46, 16, v48')
        P('v_add_f32 v44, v44, v45')
        P('v_add_f32 v44, v44, v46')
        P('v_cvt_pk_bf16_f32 v44, v44, v44')
        P('v_and_b32 v44, 0xffff0000, v44')
        if j & 1:
            P(f'v_lshrrev_b32 v45, 16, v{12 + (j >> 1)}')
        else:
            P(f'v_and_b32 v45, 0xffff, v{12 + (j >> 1)}')
        P(f'v_or_b32 v{56 + 4 * j + 1}, v44, v45')
        P(f'v_lshl_or_b32 v{56 + 4 * j}, v{36 + j}, 16, v{8 + j}')
        P(f'v_mov_b32 v{56 + 4 * j + 2}, v50')
        P(f'v_mov_b32 v{56 + 4 * j + 3}, v51')
    P('s_mov_b64 exec, s[42:43]')
    P('s_waitcnt lgkmcnt(0)')
    P('s_barrier')
    P('v_cmp_gt_u32 vcc, 64, v0')
    P('s_and_saveexec_b64 s[42:43], vcc')
    P('s_cbranch_execz K1_SKIPSCAN')
    P('v_lshlrev_b32 v1, 5, v0')
    P('ds_read_b128 v[80:83], v1')
    P('ds_read_b128 v[84:87], v1 offset:16')
    P('s_waitcnt lgkmcnt(0)')
    for i in range(1, 8):
        P(f'v_add_u32 v{80 + i}, v{80 + i}, v{79 + i}')
    P('v_mov_b32 v88, v87')
    for sh in (1, 2, 4, 8):
        P(f'v_add_u32_dpp v88, v88, v88 row_shr:{sh} row_mask:0xf bank_mask:0xf bound_ctrl:0')
    P('v_add_u32_dpp v88, v88, v88 row_bcast:15 row_mask:0xa bank_mask:0xf')
    P('v_add_u32_dpp v88, v88, v88 row_bcast:31 row_mask:0xc bank_mask:0xf')
    P('v_sub_u32 v88, v88, v87')
    for i in range(1, 8):
        P(f'v_add_u32 v{88 + i}, v88, v{79 + i}')
    P('ds_write_b128 v1, v[88:91]')
    P('ds_write_b128 v1, v[92:95] offset:16')
    for i in range(4):
        P(f'v_lshl_or_b32 v{96 + i}, v{89 + 2 * i}, 16, v{88 + 2 * i}')
    srd(24, 20, 21, NCH * 1024, OFF_TBL)
    P('s_lshl_b32 s44, s40, 10')
    P('v_lshlrev_b32 v1, 4, v0')
    P('buffer_store_dwordx4 v[96:99], v1, s[24:27], s44 offen')
    g.label('K1_SKIPSCAN')
    P('s_mov_b64 exec, s[42:43]')
    P('s_waitcnt lgkmcnt(0)')
    P('s_barrier')
    srd(28, 20, 21, E * 16, OFF_REC)
    P(f'v_cmp_gt_u32 vcc, {E}, v3')
    P('s_and_saveexec_b64 s[42:43], vcc')
    for j in range(4):
        P(f'v_lshlrev_b32 v1, 2, v{32 + j}')
        P(f'ds_read_b32 v{44 + j}, v1')
    P('s_waitcnt lgkmcnt(0)')
    for j in range(4):
        P(f'v_add_u32 v1, v{44 + j}, v{40 + j}')
        P('v_add_u32 v1, s41, v1')
        P('v_lshlrev_b32 v1, 4, v1')
        P(f'buffer_store_dwordx4 v[{56 + 4 * j}:{59 + 4 * j}], v1, s[28:31], 0 offen')
    P('s_endpgm')

    g.label('K1_NOTSORT')
    g.fence()
    P(f's_cmp_ge_u32 s2, {K1_TR}')
    P('s_cbranch_scc1 K1_END')
    P(f's_sub_u32 s40, s2, {K1_SORT}')
    P('s_waitcnt lgkmcnt(0)')
    srd(24, 18, 19, 512 * 512)
    srd(28, 20, 21, 256 * 1024, OFF_WHT)
    P('v_lshlrev_b32 v1, 1, v0')
    P('s_lshl_b32 s41, s40, 14')
    for j in range(32):
        P(f's_add_u32 s42, s41, {j * 512}')
        P(f'buffer_load_ushort v{32 + j}, v1, s[24:27], s42 offen')
    P('s_waitcnt vmcnt(0)')
    for j in range(16):
        P(f'v_lshl_or_b32 v{8 + j}, v{33 + 2 * j}, 16, v{32 + 2 * j}')
    P('v_lshlrev_b32 v2, 10, v0')
    P('s_lshl_b32 s41, s40, 6')
    P('s_waitcnt vmcnt(0)')
    for q in range(4):
        P(f'buffer_store_dwordx4 v[{8 + 4 * q}:{11 + 4 * q}], v2, s[28:31], s41 offen offset:{q * 16}')
    g.label('K1_END')
    P('s_endpgm')


def acc(i):
    if PROF:
        P('s_memtime s[98:99]')
        P('s_waitcnt lgkmcnt(0)')
        if i >= 0:
            P('s_sub_u32 s99, s98, s100')
            P(f's_add_u32 s{80 + i}, s{80 + i}, s99')
        else:
            for k in range(8): P(f's_mov_b32 s{80 + k}, 0')
        P('s_mov_b32 s100, s98')

R = 256
BS = 8320
LTOT = 8 * BS
RAW = 69632
STG = 4096
MA = 0
MH = 20480
POSA = 40960
XT = 43008
XPITCH = 1040

def k2():
    kernel_begin('gather_scatter__cheap_equivariant_egnn__graph_kernel')
    P(f's_cmp_ge_u32 s2, {NT}')
    P('s_cbranch_scc1 K2_END')
    load_ptrs()
    acc(-1)
    P('s_setprio 3')
    P('v_and_b32 v1, 63, v0')
    P('v_lshrrev_b32 v2, 6, v0')
    P('s_nop 0')
    P('v_readfirstlane_b32 s60, v2')
    P(f's_mul_i32 s61, s2, {T}')
    P('s_waitcnt lgkmcnt(0)')
    srd(24, 20, 21, NCH * 1024, OFF_TBL)
    srd(28, 20, 21, E * 16, OFF_REC)
    srd(32, 20, 21, N * 512, OFF_B)
    srd(36, 20, 21, N * 512, OFF_A)
    srd(40, 4, 5, N * 512)
    srd(44, 22, 23, 5180000)
    srd(48, 20, 21, 256 * 1024, OFF_WHT)
    srd(52, 6, 7, N * 6)
    srd(56, 14, 15, 514 * 512)
    srd(64, 16, 17, 512)
    P('s_and_b32 s62, s60, 3')
    P('s_lshr_b32 s63, s60, 2')
    P(f'v_cmp_gt_u32 vcc, {NCH}, v0')
    P('s_and_saveexec_b64 s[68:69], vcc')
    P('v_lshlrev_b32 v3, 10, v0')
    P('s_lshl_b32 s70, s2, 1')
    P('buffer_load_ushort v120, v3, s[24:27], s70 offen')
    P('buffer_load_ushort v121, v3, s[24:27], s70 offen offset:2')
    P('s_mov_b64 exec, s[68:69]')
    P('v_lshlrev_b32 v3, 4, v0')
    P('s_lshl_b32 s70, s61, 9')
    P('buffer_load_dwordx4 v[96:99], v3, s[36:39], s70 offen')
    P('v_cmp_gt_u32 vcc, 128, v0')
    P('s_and_saveexec_b64 s[68:69], vcc')
    P('buffer_load_dwordx4 v[100:103], v3, s[36:39], s70 offen offset:8192')
    g.lines.pop(); g.hist.pop()
    P('s_add_u32 s71, s70, 8192')
    P('buffer_load_dwordx4 v[100:103], v3, s[36:39], s71 offen')
    P('v_lshrrev_b32 v4, 6, v0')
    P('v_sub_u32 v4, 513, v4')
    P('v_lshlrev_b32 v4, 9, v4')
    P('v_lshl_add_u32 v4, v1, 3, v4')
    P('buffer_load_dwordx2 v[104:105], v4, s[56:59], 0 offen')
    P('s_mov_b64 exec, s[68:69]')
    P('v_and_b32 v5, 15, v1')
    P('v_lshlrev_b32 v5, 3, v5')
    P('s_lshl_b32 s72, s62, 7')
    P('buffer_load_dwordx2 v[106:107], v5, s[64:67], s72 offen')
    for r in range(4): P(f'v_mov_b32 v{108 + r}, 0')
    P(f'v_mov_b32 v6, {LTOT}')
    P('ds_write_b32 v6, v108')
    P('v_cmp_gt_u32 vcc, 320, v0')
    P('s_and_saveexec_b64 s[68:69], vcc')
    P(f'ds_write_b128 v3, v[108:111] offset:{STG + 22 * 512}')
    P('s_mov_b64 exec, s[68:69]')
    P('s_waitcnt vmcnt(0)')
    P(f'ds_write_b128 v3, v[96:99] offset:{STG}')
    P('v_cmp_gt_u32 vcc, 128, v0')
    P('s_and_saveexec_b64 s[68:69], vcc')
    P(f'ds_write_b128 v3, v[100:103] offset:{STG + 8192}')
    P(f's_mov_b32 s70, {NEG_LOG2E}')
    P('v_lshlrev_b32 v108, 16, v104')
    P('v_and_b32 v109, 0xffff0000, v104')
    P('v_lshlrev_b32 v110, 16, v105')
    P('v_and_b32 v111, 0xffff0000, v105')
    for r in range(4): P(f'v_mul_f32 v{108 + r}, s70, v{108 + r}')
    P('v_cvt_pk_bf16_f32 v108, v108, v109')
    P('v_cvt_pk_bf16_f32 v109, v110, v111')
    P('v_lshlrev_b32 v4, 3, v0')
    P(f'ds_write_b64 v4, v[108:109] offset:{STG + 20 * 512}')
    P('s_mov_b64 exec, s[68:69]')
    P(f's_mov_b32 s70, {NEG_LN2}')
    P('v_lshlrev_b32 v10, 16, v106')
    P('v_and_b32 v11, 0xffff0000, v106')
    P('v_lshlrev_b32 v12, 16, v107')
    P('v_and_b32 v13, 0xffff0000, v107')
    for r in range(4): P(f'v_mul_f32 v{10 + r}, s70, v{10 + r}')
    P('s_waitcnt lgkmcnt(0)')
    P('s_barrier')
    P(f'v_cmp_gt_u32 vcc, {NCH}, v0')
    P('s_and_saveexec_b64 s[68:69], vcc')
    P('v_sub_u32 v122, v121, v120')
    P(f'v_mov_b32 v3, {LTOT}')
    P('ds_add_rtn_u32 v123, v3, v122')
    P('v_lshl_add_u32 v120, v0, 10, v120')
    P('v_lshlrev_b32 v120, 4, v120')
    P('v_mov_b32 v121, v122')
    P('v_lshlrev_b32 v3, 4, v0')
    P(f'v_add_u32 v3, {LTOT + 16}, v3')
    P('s_waitcnt lgkmcnt(0)')
    P('v_mov_b32 v122, v123')
    P('ds_write_b96 v3, v[120:122]')
    P('s_mov_b64 exec, s[68:69]')
    P('v_lshrrev_b32 v2, 4, v1')
    P('v_lshlrev_b32 v3, 12, v2')
    P('v_add_u32 v3, v3, v5')
    P('v_add_u32 v3, s72, v3')
    for s in range(8):
        P(f'ds_read_b64 v[{96 + 2 * s}:{97 + 2 * s}], v3 offset:{STG + s * 512}')
    P('s_mov_b32 s70, 0x05040100')
    P('s_mov_b32 s71, 0x07060302')
    P('s_waitcnt lgkmcnt(0)')
    for j in range(4):
        for sp in range(4):
            lo = 96 + 4 * sp + (j >> 1); hi = lo + 2
            P(f'v_perm_b32 v{16 + 4 * j + sp}, v{hi}, v{lo}, s{70 + (j & 1)}')
    for r in range(32, 80): P(f'v_mov_b32 v{r}, 0')
    P('v_mov_b32 v1, v5')
    P('s_barrier')
    P(f'v_mov_b32 v3, {LTOT}')
    P('ds_read_b32 v4, v3')
    P('s_waitcnt lgkmcnt(0)')
    P('v_readfirstlane_b32 s66, v4')
    P('s_mov_b32 s67, 0')
    acc(0)
    g.label('K2_ROUND')
    g.fence()
    for r in range(4): P(f'v_mov_b32 v{96 + r}, 0')
    P('v_lshlrev_b32 v3, 4, v0')
    for k in range(8):
        P(f'ds_write_b128 v3, v[96:99] offset:{k * 8192}')
    P('v_cmp_gt_u32 vcc, 64, v0')
    P('s_and_saveexec_b64 s[68:69], vcc')
    P('v_add_u32 v4, 32768, v3')
    P('ds_write_b128 v4, v[96:99] offset:32768')
    P('s_mov_b64 exec, s[68:69]')
    P('s_waitcnt lgkmcnt(0)')
    P('s_barrier')
    acc(1)
    P('s_cmp_ge_u32 s60, 3')
    P('s_cbranch_scc1 K2_GDONE')
    P(f'v_cmp_gt_u32 vcc, {NCH}, v0')
    P('s_and_saveexec_b64 s[68:69], vcc')
    P('v_lshlrev_b32 v3, 4, v0')
    P(f'v_add_u32 v3, {LTOT + 16}, v3')
    P('ds_read_b96 v[120:122], v3')
    P('s_waitcnt lgkmcnt(0)')
    P('v_mov_b32 v123, v122')
    P('v_mov_b32 v122, v121')
    P('v_max_u32 v96, s67, v123')
    P('v_add_u32 v97, v123, v122')
    P(f's_add_u32 s70, s67, {R}')
    P('v_min_u32 v97, s70, v97')
    P('v_sub_u32 v98, v96, v123')
    P('v_lshl_add_u32 v98, v98, 4, v120')
    P('v_subrev_u32 v96, s67, v96')
    P('v_subrev_u32 v97, s67, v97')
    P('s_mov_b32 s74, 0x3f80')
    g.label('K2_GLOOP')
    g.fence()
    P('v_cmp_lt_i32 vcc, v96, v97')
    P('s_and_b64 exec, exec, vcc')
    P('s_cbranch_execz K2_GEND')
    P('s_mov_b64 s[76:77], exec')
    for q in range(4):
        P(f'v_add_u32 v99, {q}, v96')
        P('v_cmp_lt_i32 vcc, v99, v97')
        P('s_and_b64 exec, exec, vcc')
        P(f'buffer_load_dwordx4 v[{80 + 4 * q}:{83 + 4 * q}], v98, s[28:31], 0 offen offset:{16 * q}')
    P('s_mov_b64 exec, s[76:77]')
    P('s_waitcnt vmcnt(0)')
    for q in range(4):
        P('v_cmp_lt_i32 vcc, v96, v97')
        P('s_and_b64 exec, exec, vcc')
        P('v_lshlrev_b32 v99, 4, v96')
        P(f'v_add_u32 v99, {RAW}, v99')
        P(f'ds_write_b128 v99, v[{80 + 4 * q}:{83 + 4 * q}]')
        P('v_add_u32 v96, 1, v96')
    P('s_mov_b64 exec, s[76:77]')
    P('v_add_u32 v98, 64, v98')
    P('s_branch K2_GLOOP')
    g.label('K2_GEND')
    P('s_mov_b64 exec, s[68:69]')
    g.label('K2_GDONE')
    g.fence()
    P('s_waitcnt lgkmcnt(0)')
    P('s_barrier')
    P('s_sub_u32 s70, s66, s67')
    P(f's_min_u32 s70, s70, {R}')
    P('s_mov_b32 s74, 0x3f80')
    P('v_cmp_gt_u32 vcc, s70, v0')
    P('s_and_saveexec_b64 s[68:69], vcc')
    P('v_mov_b32 v96, v0')
    P('v_lshlrev_b32 v99, 4, v96')
    P(f'v_add_u32 v99, {RAW}, v99')
    P('ds_read_b128 v[80:83], v99')
    for q in range(1):
        P('s_waitcnt lgkmcnt(0)')
        P('v_lshrrev_b32 v104, 5, v96')
        P(f'v_mul_u32_u24 v104, {BS}, v104')
        P('v_and_b32 v105, 31, v96')
        P('v_bfe_u32 v106, v96, 2, 2')
        P('v_bfe_u32 v107, v96, 4, 1')
        P('v_lshlrev_b32 v107, 3, v107')
        P('v_and_b32 v108, 3, v96')
        P('v_lshl_add_u32 v107, v108, 1, v107')
        P('v_add_u32 v107, v107, v104')
        P('v_lshl_add_u32 v108, v105, 6, v104')
        P('v_lshl_add_u32 v109, v105, 2, v104')
        P('v_xor_b32 v110, 2, v106')
        P('v_lshl_add_u32 v110, v110, 4, v108')
        P(f'ds_write_b32 v110, v{80 + 4 * q + 1} offset:8')
        P(f'v_lshrrev_b32 v111, 16, v{80 + 4 * q + 0}')
        P(f'v_and_b32 v112, 0xffff, v{80 + 4 * q + 0}')
        P('v_lshlrev_b32 v112, 9, v112')
        P('ds_write_b32 v109, v112 offset:8192')
        P('v_lshrrev_b32 v112, 3, v111')
        P('v_xor_b32 v112, v112, v106')
        P('v_lshl_add_u32 v112, v112, 4, v108')
        P('v_and_b32 v113, 7, v111')
        P('v_lshl_add_u32 v112, v113, 1, v112')
        P('v_mov_b32 v114, s74')
        P('ds_write_b16 v112, v114')
        for k in range(4):
            if k == 0: P('v_mov_b32 v112, v111')
            else: P(f'v_add_u32 v112, {(k - 1) * T}, v111')
            P('v_bfe_u32 v113, v112, 2, 2')
            P('v_xor_b32 v113, v113, v106')
            P('v_lshlrev_b32 v113, 4, v113')
            P('v_lshl_add_u32 v113, v112, 6, v113')
            P('v_add_u32 v113, v113, v107')
            if k == 0: P('ds_write_b16 v113, v114 offset:2048')
            elif k == 1: P(f'ds_write_b16 v113, v{80 + 4 * q + 2} offset:4096')
            elif k == 2: P(f'ds_write_b16_d16_hi v113, v{80 + 4 * q + 2} offset:4096')
            else: P(f'ds_write_b16 v113, v{80 + 4 * q + 3} offset:4096')
    P('s_mov_b64 exec, s[68:69]')
    P('s_waitcnt lgkmcnt(0)')
    P('s_barrier')
    acc(2)
    P('s_setprio 0')
    P('s_sub_u32 s70, s66, s67')
    P(f's_min_u32 s70, s70, {R}')
    P('s_add_u32 s70, s70, 31')
    P('s_lshr_b32 s71, s70, 5')
    P('s_mov_b32 s70, s63')
    P('s_cmp_ge_u32 s70, s71')
    P('s_cbranch_scc1 K2_CDONE')
    P('v_and_b32 v4, 15, v0')
    P('v_bfe_u32 v2, v0, 4, 2')
    P('v_bfe_u32 v6, v0, 2, 2')
    P('v_xor_b32 v6, v6, v2')
    P('v_lshlrev_b32 v6, 4, v6')
    P('v_lshl_add_u32 v6, v4, 6, v6')
    P(f's_mul_i32 s73, s63, {BS}')
    P('v_add_u32 v14, s73, v6')
    P('v_lshlrev_b32 v7, 4, v2')
    P(f's_add_u32 s73, s73, 8192')
    P('v_add_u32 v15, s73, v7')
    def prefetch():
        P('ds_read_b128 v[88:91], v15')
        P('ds_read_b128 v[92:95], v15 offset:64')
        P('s_waitcnt lgkmcnt(0)')
        for r in range(8): P(f'v_add_u32 v{88 + r}, v{88 + r}, v1')
        for r in range(8):
            P(f'buffer_load_dwordx2 v[{80 + 2 * r}:{81 + 2 * r}], v{88 + r}, s[32:35], s72 offen')
        P(f'v_add_u32 v15, {2 * BS}, v15')
    prefetch()
    g.label('K2_BLK')
    g.fence()
    P('ds_read_b128 v[2:5], v14')
    P('ds_read_b128 v[6:9], v14 offset:1024')
    P('s_waitcnt vmcnt(0)')
    for t in range(2):
        for r in range(4):
            gsrc = 80 + 8 * t + 2 * r
            z = 96 + 16 * t + r
            P(f'v_lshlrev_b32 v{z}, 16, v{gsrc}')
            P(f'v_and_b32 v{z + 4}, 0xffff0000, v{gsrc}')
            P(f'v_lshlrev_b32 v{z + 8}, 16, v{gsrc + 1}')
            P(f'v_and_b32 v{z + 12}, 0xffff0000, v{gsrc + 1}')
    P('s_add_u32 s70, s70, 2')
    P('s_cmp_ge_u32 s70, s71')
    P('s_cbranch_scc1 K2_NOPF')
    prefetch()
    g.label('K2_NOPF')
    g.fence()
    P('s_waitcnt lgkmcnt(0)')
    for t in range(2):
        for j in range(4):
            z = 96 + 16 * t + 4 * j
            P(f'v_mfma_f32_16x16x32_bf16 v[{z}:{z + 3}], v[{2 + 4 * t}:{5 + 4 * t}], v[{16 + 4 * j}:{19 + 4 * j}], v[{z}:{z + 3}]')
    for q in range(4):
        zb = 96 + 8 * q
        for r in range(8): P(f'v_exp_f32 v{2 + r}, v{zb + r}')
        for r in range(0, 8, 2): P(f'v_pk_add_f32 v[{2 + r}:{3 + r}], v[{2 + r}:{3 + r}], 1.0 op_sel_hi:[1,0]')
        for r in range(8): P(f'v_rcp_f32 v{2 + r}, v{2 + r}')
        for r in range(0, 8, 2): P(f'v_pk_mul_f32 v[{zb + r}:{zb + r + 1}], v[{zb + r}:{zb + r + 1}], v[{2 + r}:{3 + r}]')
    for t in range(2):
        for p in range(2):
            d = 2 + 4 * t + 2 * p
            for j in range(4):
                z = 96 + 16 * t + 4 * j + 2 * p
                w = 10 + (j & 2); sel = j & 1
                if j == 0:
                    P(f'v_pk_mul_f32 v[{d}:{d + 1}], v[{z}:{z + 1}], v[{w}:{w + 1}] op_sel:[0,{sel}] op_sel_hi:[1,{sel}]')
                else:
                    P(f'v_pk_fma_f32 v[{d}:{d + 1}], v[{z}:{z + 1}], v[{w}:{w + 1}], v[{d}:{d + 1}] op_sel:[0,{sel},0] op_sel_hi:[1,{sel},1]')
    for j in range(4):
        a = 96 + 4 * j; b = 112 + 4 * j
        P(f'v_cvt_pk_bf16_f32 v{a}, v{a}, v{a + 1}')
        P(f'v_cvt_pk_bf16_f32 v{a + 1}, v{a + 2}, v{a + 3}')
        P(f'v_cvt_pk_bf16_f32 v{a + 2}, v{b}, v{b + 1}')
        P(f'v_cvt_pk_bf16_f32 v{a + 3}, v{b + 2}, v{b + 3}')
    for k in range(4):
        P(f'v_cvt_pk_bf16_f32 v{112 + k}, v{2 + 2 * k}, v{3 + 2 * k}')
    P('ds_read_b128 v[116:119], v14 offset:2048')
    P('ds_read_b128 v[120:123], v14 offset:3072') if False else None
    P('ds_read_b128 v[124:127], v14 offset:3072')
    P('ds_read_b128 v[2:5], v14 offset:4096')
    P('ds_read_b128 v[6:9], v14 offset:5120')
    for rt, reg, w in ((0, 116, 3), (1, 124, 2)):
        P(f's_waitcnt lgkmcnt({w})')
        for j in range(4):
            m = 32 + 16 * rt + 4 * j
            P(f'v_mfma_f32_16x16x32_bf16 v[{m}:{m + 3}], v[{reg}:{reg + 3}], v[{96 + 4 * j}:{99 + 4 * j}], v[{m}:{m + 3}]')
    P('ds_read_b128 v[116:119], v14 offset:6144')
    P('ds_read_b128 v[124:127], v14 offset:7168')
    for rt, reg, w in ((0, 2, 3), (1, 6, 2), (2, 116, 1), (3, 124, 0)):
        P(f's_waitcnt lgkmcnt({w})')
        m = 64 + 4 * rt
        P(f'v_mfma_f32_16x16x32_bf16 v[{m}:{m + 3}], v[{reg}:{reg + 3}], v[112:115], v[{m}:{m + 3}]')
    P(f'v_add_u32 v14, {2 * BS}, v14')
    P('s_cmp_lt_u32 s70, s71')
    P('s_cbranch_scc1 K2_BLK')
    g.label('K2_CDONE')
    g.fence()
    P('s_waitcnt vmcnt(0) lgkmcnt(0)')
    acc(3)
    P('s_setprio 3')
    P('s_barrier')
    acc(4)
    P(f's_add_u32 s67, s67, {R}')
    P('s_cmp_lt_u32 s67, s66')
    P('s_cbranch_scc1 K2_ROUND')
    P('s_nop 7'); P('s_nop 7')
    P('v_and_b32 v1, 63, v0')
    P('v_and_b32 v2, 15, v1')
    P('v_lshrrev_b32 v3, 4, v1')
    P('v_lshlrev_b32 v4, 4, v0')
    P('s_lshl_b32 s70, s61, 9')
    P('buffer_load_dwordx4 v[112:115], v4, s[40:43], s70 offen')
    P('s_add_u32 s71, s70, 8192')
    P('v_cmp_gt_u32 vcc, 128, v0')
    P('s_and_saveexec_b64 s[68:69], vcc')
    P('buffer_load_dwordx4 v[116:119], v4, s[40:43], s71 offen')
    P('s_mov_b64 exec, s[68:69]')
    P(f'v_cmp_gt_u32 vcc, {3 * T}, v0')
    P('s_and_saveexec_b64 s[68:69], vcc')
    P('s_mov_b32 s70, 0x0CCCCCCD')
    P('v_mul_hi_u32 v9, s70, v0')
    P(f'v_mul_u32_u24 v8, {T}, v9')
    P('v_sub_u32 v8, v0, v8')
    P('v_add_u32 v12, s61, v8')
    P('v_mul_u32_u24 v12, 6, v12')
    P('v_lshl_add_u32 v12, v9, 1, v12')
    P('buffer_load_ushort v13, v12, s[52:55], 0 offen')
    P('s_mov_b64 exec, s[68:69]')
    for r in range(64, 80):
        for sh in (1, 2, 4, 8):
            P(f'v_add_f32_dpp v{r}, v{r}, v{r} row_shr:{sh} row_mask:0xf bank_mask:0xf bound_ctrl:0')
    for r in range(4): P(f'v_mov_b32 v{96 + r}, 0')
    P('v_lshlrev_b32 v5, 4, v0')
    P(f'ds_write_b128 v5, v[96:99] offset:{XT + 20 * XPITCH}')
    P('v_cmp_gt_u32 vcc, 268, v0')
    P('s_and_saveexec_b64 s[68:69], vcc')
    P('v_add_u32 v6, 8192, v5')
    P(f'ds_write_b128 v6, v[96:99] offset:{XT + 20 * XPITCH}')
    P('s_mov_b64 exec, s[68:69]')
    P('v_lshlrev_b32 v5, 12, v3')
    P('v_lshl_add_u32 v5, v2, 4, v5')
    P('s_lshl_b32 s70, s62, 8')
    P(f's_mul_i32 s71, s63, {MH}')
    P('s_add_u32 s70, s70, s71')
    P('v_add_u32 v5, s70, v5')
    P('s_mov_b32 exec_lo, 0x80008000'); P('s_mov_b32 exec_hi, 0x80008000')
    P('v_lshlrev_b32 v6, 4, v3')
    P('s_lshl_b32 s70, s60, 8')
    P('v_add_u32 v6, s70, v6')
    for rt in range(4):
        P(f'ds_write_b128 v6, v[{64 + 4 * rt}:{67 + 4 * rt}] offset:{POSA + 16 * rt * 4}')
    P('s_mov_b64 exec, -1')
    for rt in range(2):
        for r in range(4):
            for j in range(4):
                P(f'v_mov_b32 v{80 + 16 * rt + 4 * r + j}, v{32 + 16 * rt + 4 * j + r}')
    for r in range(4):
        P(f'ds_write_b128 v5, v[{80 + 4 * r}:{83 + 4 * r}] offset:{MA + r * 1024}')
    P('s_mov_b64 exec, 0xffff')
    for r in range(4):
        P(f'ds_write_b128 v5, v[{96 + 4 * r}:{99 + 4 * r}] offset:{MA + (16 + r) * 1024}')
    P('s_mov_b64 exec, -1')
    P('s_lshl_b32 s70, s60, 5')
    P('v_add_u32 v4, s70, v2')
    P('v_lshlrev_b32 v4, 10, v4')
    P('v_lshl_add_u32 v4, v3, 4, v4')
    for ks in range(16):
        P(f'buffer_load_dwordx4 v[{16 + 4 * ks}:{19 + 4 * ks}], v4, s[48:51], 0 offen offset:{ks * 64}')
    P('v_add_u32 v120, 16384, v4')
    P('v_lshrrev_b32 v5, 5, v0')
    P('v_and_b32 v6, 31, v0')
    P(f'v_mul_u32_u24 v7, {XPITCH}, v5')
    P('v_lshl_add_u32 v7, v6, 4, v7')
    P(f'v_add_u32 v7, {XT}, v7')
    P('s_waitcnt vmcnt(17)')
    P('ds_write_b128 v7, v[112:115]')
    P('v_cmp_gt_u32 vcc, 128, v0')
    P('s_and_saveexec_b64 s[68:69], vcc')
    P(f'ds_write_b128 v7, v[116:119] offset:{16 * XPITCH}')
    P('s_mov_b64 exec, s[68:69]')
    P('s_waitcnt lgkmcnt(0)')
    P('s_barrier')
    acc(6)
    P(f's_mov_b32 s70, {NEG_LN2}')
    for hh in range(2):
        if hh:
            P('v_cmp_gt_u32 vcc, 128, v0')
            P('s_and_saveexec_b64 s[68:69], vcc')
        P('v_lshlrev_b32 v8, 10, v5')
        P('v_lshl_add_u32 v8, v6, 5, v8')
        P(f'ds_read_b128 v[96:99], v8 offset:{MA + hh * 16384}')
        P(f'ds_read_b128 v[100:103], v8 offset:{MA + hh * 16384 + 16}')
        P(f'ds_read_b128 v[104:107], v8 offset:{MA + MH + hh * 16384}')
        P(f'ds_read_b128 v[108:111], v8 offset:{MA + MH + hh * 16384 + 16}')
        P('s_waitcnt lgkmcnt(0)')
        for r in range(8): P(f'v_add_f32 v{96 + r}, v{96 + r}, v{104 + r}')
        for r in range(8): P(f'v_mul_f32 v{96 + r}, s70, v{96 + r}')
        for r in range(4): P(f'v_cvt_pk_bf16_f32 v{104 + r}, v{96 + 2 * r}, v{97 + 2 * r}')
        P(f'ds_write_b128 v7, v[104:107] offset:{512 + hh * 16 * XPITCH}')
        if hh: P('s_mov_b64 exec, s[68:69]')
    P(f'v_cmp_gt_u32 vcc, {3 * T}, v0')
    P('s_and_saveexec_b64 s[68:69], vcc')
    P('v_lshlrev_b32 v10, 2, v0')
    for w_ in range(8):
        P(f'ds_read_b32 v{100 + w_}, v10 offset:{POSA + w_ * 256}')
    P('s_waitcnt vmcnt(16) lgkmcnt(0)')
    for w_ in range(1, 8):
        P(f'v_add_f32 v100, v100, v{100 + w_}')
    P('v_lshlrev_b32 v13, 16, v13')
    P('v_add_f32 v13, v13, v100')
    P('v_cvt_pk_bf16_f32 v13, v13, v13')
    P('s_mov_b32 s70, 5120000')
    P('buffer_store_short v13, v12, s[44:47], s70 offen')
    P('s_mov_b64 exec, s[68:69]')
    P('s_waitcnt lgkmcnt(0)')
    P('s_barrier')
    acc(7)
    P(f'v_mul_u32_u24 v5, {XPITCH}, v2')
    P('v_lshl_add_u32 v5, v3, 4, v5')
    P(f'v_add_u32 v5, {XT}, v5')
    for half in range(2):
        for nt in range(2):
            for ks in range(16):
                P(f'ds_read_b128 v[{96 + 4 * (ks % 4)}:{99 + 4 * (ks % 4)}], v5 offset:{nt * 16 * XPITCH + ks * 64}')
                if ks % 4 == 3:
                    for kk in range(4):
                        kq = ks - 3 + kk
                        if nt == 0:
                            P(f's_waitcnt vmcnt({15 - kq}) lgkmcnt({3 - kk})')
                        else:
                            P(f's_waitcnt lgkmcnt({3 - kk})')
                        c = '0' if kq == 0 else f'v[{80 + 4 * nt}:{83 + 4 * nt}]'
                        P(f'v_mfma_f32_16x16x32_bf16 v[{80 + 4 * nt}:{83 + 4 * nt}], v[{16 + 4 * kq}:{19 + 4 * kq}], v[{96 + 4 * kk}:{99 + 4 * kk}], {c}')
                    if half == 0 and nt == 1:
                        P('s_nop 7')
                        for kk in range(4):
                            kq = ks - 3 + kk
                            P(f'buffer_load_dwordx4 v[{16 + 4 * kq}:{19 + 4 * kq}], v120, s[48:51], 0 offen offset:{kq * 64}')
        P('s_mov_b32 s70, 0xbfb8aa3b')
        P('s_lshl_b32 s71, s60, 6')
        P(f's_add_u32 s71, s71, {half * 32}')
        P('v_lshlrev_b32 v6, 3, v3')
        P('v_add_u32 v6, s71, v6')
        for nt in range(2):
            P(f'v_add_u32 v7, {16 * nt}, v2')
            P(f'v_mul_u32_u24 v8, {XPITCH}, v7')
            P('v_add_u32 v8, v8, v6')
            P(f'ds_read_b64 v[10:11], v8 offset:{XT}')
            for r in range(4): P(f'v_mul_f32 v{96 + r}, s70, v{80 + 4 * nt + r}')
            for r in range(4): P(f'v_exp_f32 v{96 + r}, v{96 + r}')
            for r in range(4): P(f'v_add_f32 v{96 + r}, 1.0, v{96 + r}')
            for r in range(4): P(f'v_rcp_f32 v{96 + r}, v{96 + r}')
            for r in range(4): P(f'v_mul_f32 v{96 + r}, v{96 + r}, v{80 + 4 * nt + r}')
            P('s_waitcnt lgkmcnt(0)')
            P('v_lshlrev_b32 v100, 16, v10')
            P('v_and_b32 v101, 0xffff0000, v10')
            P('v_lshlrev_b32 v102, 16, v11')
            P('v_and_b32 v103, 0xffff0000, v11')
            for r in range(4): P(f'v_add_f32 v{96 + r}, v{96 + r}, v{100 + r}')
            P(f'v_cvt_pk_bf16_f32 v{122 + 2 * nt}, v96, v97')
            P(f'v_cvt_pk_bf16_f32 v{123 + 2 * nt}, v98, v99')
            P('v_add_u32 v9, s61, v7')
            P('v_lshlrev_b32 v9, 9, v9')
            P('v_add_u32 v9, v9, v6')
            P(f'v_cmp_gt_u32 vcc, {T}, v7')
            P('s_and_saveexec_b64 s[68:69], vcc')
            P(f'buffer_store_dwordx2 v[{122 + 2 * nt}:{123 + 2 * nt}], v9, s[44:47], 0 offen')
            P('s_mov_b64 exec, s[68:69]')
    acc(1)
    if PROF:
        srd(64, 20, 21, 0x1000000, 0x3000000)
        for k in range(8): P(f'v_mov_b32 v{2 + k}, s{80 + k}')
        P('s_lshl_b32 s70, s2, 8')
        P('s_lshl_b32 s71, s60, 5')
        P('s_add_u32 s70, s70, s71')
        P('v_mov_b32 v1, 0')
        P('s_mov_b64 exec, 1')
        P('buffer_store_dwordx4 v[2:5], v1, s[64:67], s70 offen')
        P('buffer_store_dwordx4 v[6:9], v1, s[64:67], s70 offen offset:16')
    g.label('K2_END')
    P('s_endpgm')

if __name__ == '__main__':
    header()
    k1()
    k2()
    kernel_desc('egnn_prep_kernel', 112)
    kernel_desc('gather_scatter__cheap_equivariant_egnn__graph_kernel', 128)
    out = sys.argv[1] if len(sys.argv) > 1 else 'k2.s'
    open(out, 'w').write(g.text())
```

```python
import sys
from asmgen import Gen

N = 10000
E = 160000
D = 256
T = 20
NT = 500
CH = 1024
NCH = 157

OFF_B = 0x0000000
OFF_A = 0x0800000
OFF_TBL = 0x1400000
OFF_REC = 0x1500000
OFF_WHT = 0x1800000

NEG_LOG2E = '0xbfb8aa3b'
NEG_LN2 = '0xbf317218'

LDSK2 = 76800
K1_GEMM = 628
K1_SORT = K1_GEMM + NCH
K1_TR = K1_SORT + 16

g = Gen()
import os
EXP = os.environ.get('EXP','')
DEBUG = len(sys.argv) > 2 and sys.argv[2] == 'dbg'
PROF = len(sys.argv) > 2 and sys.argv[2] == 'prof'
def stamp(i, vreg=126):
    if PROF:
        P('s_memtime s[100:101]')
        P('s_waitcnt lgkmcnt(0)')
        P(f'v_writelane_b32 v{vreg}, s100, {i}')
def prof_store(base, waves_per_wg, vreg=126):
    if PROF:
        srd(64, 20, 21, 0x1000000, base)
        P('v_and_b32 v125, 63, v0')
        P('v_lshlrev_b32 v125, 2, v125')
        P('v_lshrrev_b32 v124, 6, v0')
        P('v_lshlrev_b32 v124, 8, v124')
        P('v_add_u32 v125, v124, v125')
        P(f's_mul_i32 s100, s2, {waves_per_wg * 256}')
        P(f'buffer_store_dword v{vreg}, v125, s[64:67], s100 offen')
P = g

def srd(d, lo, hi, nbytes, off=0):
    if off:
        P(f's_add_u32 s{d}, s{lo}, {off}')
        P(f's_addc_u32 s{d+1}, s{hi}, 0')
        P(f's_and_b32 s{d+1}, s{d+1}, 0xffff')
    else:
        P(f's_mov_b32 s{d}, s{lo}')
        P(f's_and_b32 s{d+1}, s{hi}, 0xffff')
    P(f's_mov_b32 s{d+2}, {nbytes}')
    P(f's_mov_b32 s{d+3}, 0x00020000')

def header():
    g.raw(('''; EGNN layer: K1 (node GEMMs A'=h@W1, B'=h@W2, per-chunk edge bucketing, w_h transpose) then K2 (edge phase + node update)
; @launch kernel=egnn_prep_kernel grid=(%d,1,1) block=(256,1,1) lds=69632
; @launch kernel=gather_scatter__cheap_equivariant_egnn__graph_kernel grid=(%d,1,1) block=(512,1,1) lds=LDSK2
.amdgcn_target "amdgcn-amd-amdhsa--gfx950"
.text''').replace('LDSK2',str(LDSK2)) % (K1_TR, NT))

def kernel_begin(name):
    g.raw(f'.globl {name}\n.p2align 8\n.type {name},@function\n{name}:')
    g.fence()

def kernel_desc(name, vgpr, sgpr=102):
    acc = (vgpr + 3) // 4 * 4
    g.raw(f'''.section .rodata,"a"
.p2align 6
.amdhsa_kernel {name}
  .amdhsa_next_free_vgpr {vgpr}
  .amdhsa_next_free_sgpr {sgpr}
  .amdhsa_accum_offset {acc}
  .amdhsa_group_segment_fixed_size 0
  .amdhsa_kernarg_size 88
  .amdhsa_user_sgpr_count 2
  .amdhsa_user_sgpr_kernarg_segment_ptr 1
  .amdhsa_system_sgpr_workgroup_id_x 1
.end_amdhsa_kernel
.text''')

def load_ptrs():
    P('s_load_dwordx16 s[4:19], s[0:1], 0')
    P('s_load_dwordx2 s[20:21], s[0:1], 80')
    P('s_load_dwordx2 s[22:23], s[0:1], 64')

def k1():
    kernel_begin('egnn_prep_kernel')
    load_ptrs()
    P(f's_cmp_ge_u32 s2, {K1_GEMM}')
    P('s_cbranch_scc1 K1_NOTGEMM')
    P('s_waitcnt lgkmcnt(0)')
    srd(24, 14, 15, 514 * 512)
    srd(28, 4, 5, N * 512)
    P('s_and_b32 s40, s2, 3')
    P('s_lshr_b32 s41, s2, 2')
    P('s_lshr_b32 s42, s40, 1')
    P('s_lshl_b32 s42, s42, 17')
    P('s_and_b32 s43, s40, 1')
    P('s_lshl_b32 s44, s43, 8')
    P('s_add_u32 s42, s42, s44')
    P('v_lshrrev_b32 v1, 4, v0')
    P('v_and_b32 v2, 15, v0')
    P('v_lshlrev_b32 v3, 9, v1')
    P('v_lshl_add_u32 v3, v2, 4, v3')
    for i in range(16):
        P(f's_add_u32 s45, s42, {i * 8192}')
        P(f'buffer_load_dwordx4 v[{8 + 4 * i}:{11 + 4 * i}], v3, s[24:27], s45 offen')
    P('v_and_b32 v4, 63, v0')
    P('v_lshrrev_b32 v5, 6, v0')
    P('s_lshl_b32 s46, s41, 6')
    P('v_lshlrev_b32 v5, 4, v5')
    P('v_add_u32 v5, s46, v5')
    P('v_and_b32 v6, 15, v4')
    P('v_add_u32 v5, v5, v6')
    P('v_lshrrev_b32 v6, 4, v4')
    P('v_lshlrev_b32 v7, 9, v5')
    P('v_lshl_add_u32 v7, v6, 4, v7')
    for ks in range(8):
        P(f'buffer_load_dwordx4 v[{72 + 4 * ks}:{75 + 4 * ks}], v7, s[28:31], 0 offen offset:{ks * 64}')
    P('v_mul_u32_u24 v104, 272, v1')
    P('v_lshl_add_u32 v104, v2, 4, v104')
    for i in range(16):
        P(f's_waitcnt vmcnt({8 + 15 - i})')
        P(f'ds_write_b128 v104, v[{8 + 4 * i}:{11 + 4 * i}] offset:{i * 4352}')
    srd(32, 20, 21, N * 512, OFF_A)
    srd(36, 20, 21, N * 512, OFF_B)
    P('v_bfe_u32 v105, v4, 2, 2')
    P('v_lshl_add_u32 v105, v6, 3, v105')
    P('v_mul_u32_u24 v105, 272, v105')
    P('v_and_b32 v106, 3, v4')
    P('v_lshl_add_u32 v105, v106, 3, v105')
    P('v_lshlrev_b32 v106, 10, v5')
    P('v_lshl_add_u32 v106, v6, 4, v106')
    P('v_lshlrev_b32 v107, 9, v5')
    P('v_lshl_add_u32 v107, v6, 3, v107')
    P('s_lshl_b32 s47, s43, 9')
    P('s_lshl_b32 s48, s43, 8')
    P(f's_mov_b32 s49, {NEG_LOG2E}')
    P('s_waitcnt lgkmcnt(0)')
    P('s_barrier')
    P('s_waitcnt vmcnt(0)')
    for nt in range(8):
        for ks in range(8):
            P(f'ds_read_b64_tr_b16 v[{8 + 4 * ks}:{9 + 4 * ks}], v105 offset:{ks * 8704 + nt * 32}')
            P(f'ds_read_b64_tr_b16 v[{10 + 4 * ks}:{11 + 4 * ks}], v105 offset:{ks * 8704 + nt * 32 + 1088}')
        for ks in range(8):
            P(f's_waitcnt lgkmcnt({14 - 2 * ks})')
            c = '0' if ks == 0 else 'v[40:43]'
            P(f'v_mfma_f32_16x16x32_bf16 v[40:43], v[{8 + 4 * ks}:{11 + 4 * ks}], v[{72 + 4 * ks}:{75 + 4 * ks}], {c}')
        for r in range(4):
            P(f'v_mul_f32 v{44 + r}, s49, v{40 + r}')
        P('v_cvt_pk_bf16_f32 v48, v44, v45')
        P('v_cvt_pk_bf16_f32 v49, v46, v47')
        P('s_cmp_ge_u32 s40, 2')
        P(f's_cbranch_scc1 K1_STB{nt}')
        P(f'buffer_store_dwordx2 v[48:49], v107, s[32:35], s48 offen offset:{nt * 32}')
        P(f's_branch K1_STD{nt}')
        g.label(f'K1_STB{nt}')
        P(f'buffer_store_dwordx2 v[48:49], v107, s[36:39], s48 offen offset:{nt * 32}')
        g.label(f'K1_STD{nt}')
        P('s_nop 1')
    P('s_endpgm')

    g.label('K1_NOTGEMM')
    g.fence()
    P(f's_cmp_ge_u32 s2, {K1_SORT}')
    P('s_cbranch_scc1 K1_NOTSORT')
    P(f's_sub_u32 s40, s2, {K1_GEMM}')
    P('s_waitcnt lgkmcnt(0)')
    srd(24, 12, 13, E * 4)
    srd(28, 10, 11, E * 4)
    srd(32, 8, 9, E * 2)
    srd(36, 6, 7, N * 6)
    P('v_lshlrev_b32 v1, 2, v0')
    P('v_mov_b32 v2, 0')
    P('ds_write_b32 v1, v2')
    P('ds_write_b32 v1, v2 offset:1024')
    P('s_lshl_b32 s41, s40, 10')
    P('v_lshlrev_b32 v3, 2, v0')
    P('v_add_u32 v3, s41, v3')
    P(f'v_cmp_gt_u32 vcc, {E}, v3')
    P('s_and_saveexec_b64 s[42:43], vcc')
    P('v_lshlrev_b32 v1, 2, v3')
    P('buffer_load_dwordx4 v[4:7], v1, s[24:27], 0 offen')
    P('buffer_load_dwordx4 v[8:11], v1, s[28:31], 0 offen')
    P('v_lshlrev_b32 v1, 1, v3')
    P('buffer_load_dwordx2 v[12:13], v1, s[32:35], 0 offen')
    P('s_waitcnt lgkmcnt(0)')
    P('s_barrier')
    P('s_waitcnt vmcnt(0)')
    P('s_mov_b32 s44, 0x0CCCCCCD')
    for j in range(4):
        for (idx, dreg) in ((4 + j, 16 + 4 * j), (8 + j, 18 + 4 * j)):
            P(f'v_mul_u32_u24 v1, 6, v{idx}')
            P('v_and_b32 v1, -4, v1')
            P(f'buffer_load_dwordx2 v[{dreg}:{dreg + 1}], v1, s[36:39], 0 offen')
    for j in range(4):
        P(f'v_mul_hi_u32 v{32 + j}, s44, v{4 + j}')
        P(f'v_mul_u32_u24 v1, {T}, v{32 + j}')
        P(f'v_sub_u32 v{36 + j}, v{4 + j}, v1')
        P(f'v_lshlrev_b32 v1, 2, v{32 + j}')
        P('v_mov_b32 v2, 1')
        P(f'ds_add_rtn_u32 v{40 + j}, v1, v2')
    P('s_waitcnt vmcnt(0)')
    for j in range(4):
        pd = 16 + 4 * j; ps = 18 + 4 * j
        for (idx, r) in ((4 + j, pd), (8 + j, ps)):
            P(f'v_and_b32 v1, 1, v{idx}')
            P('v_lshlrev_b32 v1, 4, v1')
            P(f'v_lshrrev_b64 v[{r}:{r + 1}], v1, v[{r}:{r + 1}]')
        P(f'v_lshlrev_b32 v1, 16, v{pd}')
        P(f'v_lshlrev_b32 v2, 16, v{ps}')
        P('v_sub_f32 v44, v1, v2')
        P(f'v_and_b32 v1, 0xffff0000, v{pd}')
        P(f'v_and_b32 v2, 0xffff0000, v{ps}')
        P('v_sub_f32 v45, v1, v2')
        P(f'v_lshlrev_b32 v1, 16, v{pd + 1}')
        P(f'v_lshlrev_b32 v2, 16, v{ps + 1}')
        P('v_sub_f32 v46, v1, v2')
        P('v_cvt_pk_bf16_f32 v50, v44, v45')
        P('v_cvt_pk_bf16_f32 v51, v46, v46')
        P('v_and_b32 v51, 0xffff, v51')
        P('v_lshlrev_b32 v44, 16, v50')
        P('v_and_b32 v45, 0xffff0000, v50')
        P('v_lshlrev_b32 v46, 16, v51')
        P('v_mul_f32 v44, v44, v44')
        P('v_mul_f32 v45, v45, v45')
        P('v_mul_f32 v46, v46, v46')
        P('v_cvt_pk_bf16_f32 v47, v44, v45')
        P('v_cvt_pk_bf16_f32 v48, v46, v46')
        P('v_lshlrev_b32 v44, 16, v47')
        P('v_and_b32 v45, 0xffff0000, v47')
        P('v_lshlrev_b32 v46, 16, v48')
        P('v_add_f32 v44, v44, v45')
        P('v_add_f32 v44, v44, v46')
        P('v_cvt_pk_bf16_f32 v44, v44, v44')
        P('v_and_b32 v44, 0xffff0000, v44')
        if j & 1:
            P(f'v_lshrrev_b32 v45, 16, v{12 + (j >> 1)}')
        else:
            P(f'v_and_b32 v45, 0xffff, v{12 + (j >> 1)}')
        P(f'v_or_b32 v{56 + 4 * j + 1}, v44, v45')
        P(f'v_lshl_or_b32 v{56 + 4 * j}, v{36 + j}, 16, v{8 + j}')
        P(f'v_mov_b32 v{56 + 4 * j + 2}, v50')
        P(f'v_mov_b32 v{56 + 4 * j + 3}, v51')
    P('s_mov_b64 exec, s[42:43]')
    P('s_waitcnt lgkmcnt(0)')
    P('s_barrier')
    P('v_cmp_gt_u32 vcc, 64, v0')
    P('s_and_saveexec_b64 s[42:43], vcc')
    P('s_cbranch_execz K1_SKIPSCAN')
    P('v_lshlrev_b32 v1, 5, v0')
    P('ds_read_b128 v[80:83], v1')
    P('ds_read_b128 v[84:87], v1 offset:16')
    P('s_waitcnt lgkmcnt(0)')
    for i in range(1, 8):
        P(f'v_add_u32 v{80 + i}, v{80 + i}, v{79 + i}')
    P('v_mov_b32 v88, v87')
    for sh in (1, 2, 4, 8):
        P(f'v_add_u32_dpp v88, v88, v88 row_shr:{sh} row_mask:0xf bank_mask:0xf bound_ctrl:0')
    P('v_add_u32_dpp v88, v88, v88 row_bcast:15 row_mask:0xa bank_mask:0xf')
    P('v_add_u32_dpp v88, v88, v88 row_bcast:31 row_mask:0xc bank_mask:0xf')
    P('v_sub_u32 v88, v88, v87')
    for i in range(1, 8):
        P(f'v_add_u32 v{88 + i}, v88, v{79 + i}')
    P('ds_write_b128 v1, v[88:91]')
    P('ds_write_b128 v1, v[92:95] offset:16')
    for i in range(4):
        P(f'v_lshl_or_b32 v{96 + i}, v{89 + 2 * i}, 16, v{88 + 2 * i}')
    srd(24, 20, 21, NCH * 1024, OFF_TBL)
    P('s_lshl_b32 s44, s40, 10')
    P('v_lshlrev_b32 v1, 4, v0')
    P('buffer_store_dwordx4 v[96:99], v1, s[24:27], s44 offen')
    g.label('K1_SKIPSCAN')
    P('s_mov_b64 exec, s[42:43]')
    P('s_waitcnt lgkmcnt(0)')
    P('s_barrier')
    srd(28, 20, 21, E * 16, OFF_REC)
    P(f'v_cmp_gt_u32 vcc, {E}, v3')
    P('s_and_saveexec_b64 s[42:43], vcc')
    for j in range(4):
        P(f'v_lshlrev_b32 v1, 2, v{32 + j}')
        P(f'ds_read_b32 v{44 + j}, v1')
    P('s_waitcnt lgkmcnt(0)')
    for j in range(4):
        P(f'v_add_u32 v1, v{44 + j}, v{40 + j}')
        P('v_add_u32 v1, s41, v1')
        P('v_lshlrev_b32 v1, 4, v1')
        P(f'buffer_store_dwordx4 v[{56 + 4 * j}:{59 + 4 * j}], v1, s[28:31], 0 offen')
    P('s_endpgm')

    g.label('K1_NOTSORT')
    g.fence()
    P(f's_cmp_ge_u32 s2, {K1_TR}')
    P('s_cbranch_scc1 K1_END')
    P(f's_sub_u32 s40, s2, {K1_SORT}')
    P('s_waitcnt lgkmcnt(0)')
    srd(24, 18, 19, 512 * 512)
    srd(28, 20, 21, 256 * 1024, OFF_WHT)
    P('v_lshlrev_b32 v1, 1, v0')
    P('s_lshl_b32 s41, s40, 14')
    for j in range(32):
        P(f's_add_u32 s42, s41, {j * 512}')
        P(f'buffer_load_ushort v{32 + j}, v1, s[24:27], s42 offen')
    P('s_waitcnt vmcnt(0)')
    for j in range(16):
        P(f'v_lshl_or_b32 v{8 + j}, v{33 + 2 * j}, 16, v{32 + 2 * j}')
    P('v_lshlrev_b32 v2, 10, v0')
    P('s_lshl_b32 s41, s40, 6')
    P('s_waitcnt vmcnt(0)')
    for q in range(4):
        P(f'buffer_store_dwordx4 v[{8 + 4 * q}:{11 + 4 * q}], v2, s[28:31], s41 offen offset:{q * 16}')
    g.label('K1_END')
    P('s_endpgm')


def acc(i):
    if PROF:
        P('s_memtime s[98:99]')
        P('s_waitcnt lgkmcnt(0)')
        if i >= 0:
            P('s_sub_u32 s99, s98, s100')
            P(f's_add_u32 s{80 + i}, s{80 + i}, s99')
        else:
            for k in range(8): P(f's_mov_b32 s{80 + k}, 0')
        P('s_mov_b32 s100, s98')

R = 256
BS = 8320
LTOT = 8 * BS
RAW = 69632
STG = 4096
MA = 0
MH = 20480
POSA = 40960
XT = 43008
XPITCH = 1040

def stage1(tag, sb):
    P('s_cmp_ge_u32 s60, 3')
    P(f's_cbranch_scc1 K2_GDONE{tag}')
    P(f'v_cmp_gt_u32 vcc, {NCH}, v0')
    P('s_and_saveexec_b64 s[68:69], vcc')
    P('v_lshlrev_b32 v3, 4, v0')
    P(f'v_add_u32 v3, {LTOT + 16}, v3')
    P('ds_read_b96 v[120:122], v3')
    P('s_waitcnt lgkmcnt(0)')
    P('v_mov_b32 v123, v122')
    P('v_mov_b32 v122, v121')
    P(f'v_max_u32 v96, {sb}, v123')
    P('v_add_u32 v97, v123, v122')
    P(f's_add_u32 s70, {sb}, {R}')
    P('v_min_u32 v97, s70, v97')
    P('v_sub_u32 v98, v96, v123')
    P('v_lshl_add_u32 v98, v98, 4, v120')
    P(f'v_subrev_u32 v96, {sb}, v96')
    P(f'v_subrev_u32 v97, {sb}, v97')
    P('s_mov_b32 s74, 0x3f80')
    g.label(f'K2_GLOOP{tag}')
    g.fence()
    P('v_cmp_lt_i32 vcc, v96, v97')
    P('s_and_b64 exec, exec, vcc')
    P(f's_cbranch_execz K2_GEND{tag}')
    P('s_mov_b64 s[76:77], exec')
    for q in range(4):
        P(f'v_add_u32 v99, {q}, v96')
        P('v_cmp_lt_i32 vcc, v99, v97')
        P('s_and_b64 exec, exec, vcc')
        P(f'buffer_load_dwordx4 v[{80 + 4 * q}:{83 + 4 * q}], v98, s[28:31], 0 offen offset:{16 * q}')
    P('s_mov_b64 exec, s[76:77]')
    P('s_waitcnt vmcnt(0)')
    for q in range(4):
        P('v_cmp_lt_i32 vcc, v96, v97')
        P('s_and_b64 exec, exec, vcc')
        P('v_lshlrev_b32 v99, 4, v96')
        P(f'v_add_u32 v99, {RAW}, v99')
        P(f'ds_write_b128 v99, v[{80 + 4 * q}:{83 + 4 * q}]')
        P('v_add_u32 v96, 1, v96')
    P('s_mov_b64 exec, s[76:77]')
    P('v_add_u32 v98, 64, v98')
    P(f's_branch K2_GLOOP{tag}')
    g.label(f'K2_GEND{tag}')
    P('s_mov_b64 exec, s[68:69]')
    g.label(f'K2_GDONE{tag}')
    g.fence()

def k2():
    kernel_begin('gather_scatter__cheap_equivariant_egnn__graph_kernel')
    P(f's_cmp_ge_u32 s2, {NT}')
    P('s_cbranch_scc1 K2_END')
    load_ptrs()
    acc(-1)
    P('s_setprio 3')
    P('v_and_b32 v1, 63, v0')
    P('v_lshrrev_b32 v2, 6, v0')
    P('s_nop 0')
    P('v_readfirstlane_b32 s60, v2')
    P(f's_mul_i32 s61, s2, {T}')
    P('s_waitcnt lgkmcnt(0)')
    srd(24, 20, 21, NCH * 1024, OFF_TBL)
    srd(28, 20, 21, E * 16, OFF_REC)
    srd(32, 20, 21, N * 512, OFF_B)
    srd(36, 20, 21, N * 512, OFF_A)
    srd(40, 4, 5, N * 512)
    srd(44, 22, 23, 5180000)
    srd(48, 20, 21, 256 * 1024, OFF_WHT)
    srd(52, 6, 7, N * 6)
    srd(56, 14, 15, 514 * 512)
    srd(64, 16, 17, 512)
    P('s_and_b32 s62, s60, 3')
    P('s_lshr_b32 s63, s60, 2')
    P(f'v_cmp_gt_u32 vcc, {NCH}, v0')
    P('s_and_saveexec_b64 s[68:69], vcc')
    P('v_lshlrev_b32 v3, 10, v0')
    P('s_lshl_b32 s70, s2, 1')
    P('buffer_load_ushort v120, v3, s[24:27], s70 offen')
    P('buffer_load_ushort v121, v3, s[24:27], s70 offen offset:2')
    P('s_mov_b64 exec, s[68:69]')
    P('v_lshlrev_b32 v3, 4, v0')
    P('s_lshl_b32 s70, s61, 9')
    P('buffer_load_dwordx4 v[96:99], v3, s[36:39], s70 offen')
    P('v_cmp_gt_u32 vcc, 128, v0')
    P('s_and_saveexec_b64 s[68:69], vcc')
    P('buffer_load_dwordx4 v[100:103], v3, s[36:39], s70 offen offset:8192')
    g.lines.pop(); g.hist.pop()
    P('s_add_u32 s71, s70, 8192')
    P('buffer_load_dwordx4 v[100:103], v3, s[36:39], s71 offen')
    P('v_lshrrev_b32 v4, 6, v0')
    P('v_sub_u32 v4, 513, v4')
    P('v_lshlrev_b32 v4, 9, v4')
    P('v_lshl_add_u32 v4, v1, 3, v4')
    P('buffer_load_dwordx2 v[104:105], v4, s[56:59], 0 offen')
    P('s_mov_b64 exec, s[68:69]')
    P('v_and_b32 v5, 15, v1')
    P('v_lshlrev_b32 v5, 3, v5')
    P('s_lshl_b32 s72, s62, 7')
    P('buffer_load_dwordx2 v[106:107], v5, s[64:67], s72 offen')
    for r in range(4): P(f'v_mov_b32 v{108 + r}, 0')
    P(f'v_mov_b32 v6, {LTOT}')
    P('ds_write_b32 v6, v108')
    P('v_cmp_gt_u32 vcc, 320, v0')
    P('s_and_saveexec_b64 s[68:69], vcc')
    P(f'ds_write_b128 v3, v[108:111] offset:{STG + 22 * 512}')
    P('s_mov_b64 exec, s[68:69]')
    P('s_waitcnt vmcnt(0)')
    P(f'ds_write_b128 v3, v[96:99] offset:{STG}')
    P('v_cmp_gt_u32 vcc, 128, v0')
    P('s_and_saveexec_b64 s[68:69], vcc')
    P(f'ds_write_b128 v3, v[100:103] offset:{STG + 8192}')
    P(f's_mov_b32 s70, {NEG_LOG2E}')
    P('v_lshlrev_b32 v108, 16, v104')
    P('v_and_b32 v109, 0xffff0000, v104')
    P('v_lshlrev_b32 v110, 16, v105')
    P('v_and_b32 v111, 0xffff0000, v105')
    for r in range(4): P(f'v_mul_f32 v{108 + r}, s70, v{108 + r}')
    P('v_cvt_pk_bf16_f32 v108, v108, v109')
    P('v_cvt_pk_bf16_f32 v109, v110, v111')
    P('v_lshlrev_b32 v4, 3, v0')
    P(f'ds_write_b64 v4, v[108:109] offset:{STG + 20 * 512}')
    P('s_mov_b64 exec, s[68:69]')
    P(f's_mov_b32 s70, {NEG_LN2}')
    P('v_lshlrev_b32 v10, 16, v106')
    P('v_and_b32 v11, 0xffff0000, v106')
    P('v_lshlrev_b32 v12, 16, v107')
    P('v_and_b32 v13, 0xffff0000, v107')
    for r in range(4): P(f'v_mul_f32 v{10 + r}, s70, v{10 + r}')
    P('s_waitcnt lgkmcnt(0)')
    P('s_barrier')
    P(f'v_cmp_gt_u32 vcc, {NCH}, v0')
    P('s_and_saveexec_b64 s[68:69], vcc')
    P('v_sub_u32 v122, v121, v120')
    P(f'v_mov_b32 v3, {LTOT}')
    P('ds_add_rtn_u32 v123, v3, v122')
    P('v_lshl_add_u32 v120, v0, 10, v120')
    P('v_lshlrev_b32 v120, 4, v120')
    P('v_mov_b32 v121, v122')
    P('v_lshlrev_b32 v3, 4, v0')
    P(f'v_add_u32 v3, {LTOT + 16}, v3')
    P('s_waitcnt lgkmcnt(0)')
    P('v_mov_b32 v122, v123')
    P('ds_write_b96 v3, v[120:122]')
    P('s_mov_b64 exec, s[68:69]')
    P('v_lshrrev_b32 v2, 4, v1')
    P('v_lshlrev_b32 v3, 12, v2')
    P('v_add_u32 v3, v3, v5')
    P('v_add_u32 v3, s72, v3')
    for s in range(8):
        P(f'ds_read_b64 v[{96 + 2 * s}:{97 + 2 * s}], v3 offset:{STG + s * 512}')
    P('s_mov_b32 s70, 0x05040100')
    P('s_mov_b32 s71, 0x07060302')
    P('s_waitcnt lgkmcnt(0)')
    for j in range(4):
        for sp in range(4):
            lo = 96 + 4 * sp + (j >> 1); hi = lo + 2
            P(f'v_perm_b32 v{16 + 4 * j + sp}, v{hi}, v{lo}, s{70 + (j & 1)}')
    for r in range(32, 80): P(f'v_mov_b32 v{r}, 0')
    P('v_mov_b32 v1, v5')
    P('s_barrier')
    P(f'v_mov_b32 v3, {LTOT}')
    P('ds_read_b32 v4, v3')
    P('s_waitcnt lgkmcnt(0)')
    P('v_readfirstlane_b32 s66, v4')
    P('s_mov_b32 s67, 0')
    stage1('A', 's67')
    acc(0)
    g.label('K2_ROUND')
    g.fence()
    for r in range(4): P(f'v_mov_b32 v{96 + r}, 0')
    P('v_lshlrev_b32 v3, 4, v0')
    for k in range(8):
        P(f'ds_write_b128 v3, v[96:99] offset:{k * 8192}')
    P('v_cmp_gt_u32 vcc, 64, v0')
    P('s_and_saveexec_b64 s[68:69], vcc')
    P('v_add_u32 v4, 32768, v3')
    P('ds_write_b128 v4, v[96:99] offset:32768')
    P('s_mov_b64 exec, s[68:69]')
    P('s_waitcnt lgkmcnt(0)')
    P('s_barrier')
    acc(1)
    P('s_sub_u32 s70, s66, s67')
    P(f's_min_u32 s70, s70, {R}')
    P('s_mov_b32 s74, 0x3f80')
    P('v_cmp_gt_u32 vcc, s70, v0')
    P('s_and_saveexec_b64 s[68:69], vcc')
    P('v_mov_b32 v96, v0')
    P('v_lshlrev_b32 v99, 4, v96')
    P(f'v_add_u32 v99, {RAW}, v99')
    P('ds_read_b128 v[80:83], v99')
    for q in range(1):
        P('s_waitcnt lgkmcnt(0)')
        P('v_lshrrev_b32 v104, 5, v96')
        P(f'v_mul_u32_u24 v104, {BS}, v104')
        P('v_and_b32 v105, 31, v96')
        P('v_bfe_u32 v106, v96, 2, 2')
        P('v_bfe_u32 v107, v96, 4, 1')
        P('v_lshlrev_b32 v107, 3, v107')
        P('v_and_b32 v108, 3, v96')
        P('v_lshl_add_u32 v107, v108, 1, v107')
        P('v_add_u32 v107, v107, v104')
        P('v_lshl_add_u32 v108, v105, 6, v104')
        P('v_lshl_add_u32 v109, v105, 2, v104')
        P('v_xor_b32 v110, 2, v106')
        P('v_lshl_add_u32 v110, v110, 4, v108')
        P(f'ds_write_b32 v110, v{80 + 4 * q + 1} offset:8')
        P(f'v_lshrrev_b32 v111, 16, v{80 + 4 * q + 0}')
        P(f'v_and_b32 v112, 0xffff, v{80 + 4 * q + 0}')
        P('v_lshlrev_b32 v112, 9, v112')
        P('ds_write_b32 v109, v112 offset:8192')
        P('v_lshrrev_b32 v112, 3, v111')
        P('v_xor_b32 v112, v112, v106')
        P('v_lshl_add_u32 v112, v112, 4, v108')
        P('v_and_b32 v113, 7, v111')
        P('v_lshl_add_u32 v112, v113, 1, v112')
        P('v_mov_b32 v114, s74')
        P('ds_write_b16 v112, v114')
        for k in range(4):
            if k == 0: P('v_mov_b32 v112, v111')
            else: P(f'v_add_u32 v112, {(k - 1) * T}, v111')
            P('v_bfe_u32 v113, v112, 2, 2')
            P('v_xor_b32 v113, v113, v106')
            P('v_lshlrev_b32 v113, 4, v113')
            P('v_lshl_add_u32 v113, v112, 6, v113')
            P('v_add_u32 v113, v113, v107')
            if k == 0: P('ds_write_b16 v113, v114 offset:2048')
            elif k == 1: P(f'ds_write_b16 v113, v{80 + 4 * q + 2} offset:4096')
            elif k == 2: P(f'ds_write_b16_d16_hi v113, v{80 + 4 * q + 2} offset:4096')
            else: P(f'ds_write_b16 v113, v{80 + 4 * q + 3} offset:4096')
    P('s_mov_b64 exec, s[68:69]')
    P('s_waitcnt lgkmcnt(0)')
    P('s_barrier')
    acc(2)
    P('s_setprio 0')
    P('s_sub_u32 s70, s66, s67')
    P(f's_min_u32 s70, s70, {R}')
    P('s_add_u32 s70, s70, 31')
    P('s_lshr_b32 s71, s70, 5')
    P('s_mov_b32 s70, s63')
    P('s_cmp_ge_u32 s70, s71')
    P('s_cbranch_scc1 K2_CDONE')
    P('v_and_b32 v4, 15, v0')
    P('v_bfe_u32 v2, v0, 4, 2')
    P('v_bfe_u32 v6, v0, 2, 2')
    P('v_xor_b32 v6, v6, v2')
    P('v_lshlrev_b32 v6, 4, v6')
    P('v_lshl_add_u32 v6, v4, 6, v6')
    P(f's_mul_i32 s73, s63, {BS}')
    P('v_add_u32 v14, s73, v6')
    P('v_lshlrev_b32 v7, 4, v2')
    P(f's_add_u32 s73, s73, 8192')
    P('v_add_u32 v15, s73, v7')
    def prefetch():
        P('ds_read_b128 v[88:91], v15')
        P('ds_read_b128 v[92:95], v15 offset:64')
        P('s_waitcnt lgkmcnt(0)')
        for r in range(8): P(f'v_add_u32 v{88 + r}, v{88 + r}, v1')
        for r in range(8):
            P(f'buffer_load_dwordx2 v[{80 + 2 * r}:{81 + 2 * r}], v{88 + r}, s[32:35], s72 offen')
        P(f'v_add_u32 v15, {2 * BS}, v15')
    prefetch()
    g.label('K2_BLK')
    g.fence()
    P('ds_read_b128 v[2:5], v14')
    P('ds_read_b128 v[6:9], v14 offset:1024')
    P('s_waitcnt vmcnt(0)')
    for t in range(2):
        for r in range(4):
            gsrc = 80 + 8 * t + 2 * r
            z = 96 + 16 * t + r
            P(f'v_lshlrev_b32 v{z}, 16, v{gsrc}')
            P(f'v_and_b32 v{z + 4}, 0xffff0000, v{gsrc}')
            P(f'v_lshlrev_b32 v{z + 8}, 16, v{gsrc + 1}')
            P(f'v_and_b32 v{z + 12}, 0xffff0000, v{gsrc + 1}')
    P('s_add_u32 s70, s70, 2')
    P('s_cmp_ge_u32 s70, s71')
    P('s_cbranch_scc1 K2_NOPF')
    prefetch()
    g.label('K2_NOPF')
    g.fence()
    P('s_waitcnt lgkmcnt(0)')
    for t in range(2):
        for j in range(4):
            z = 96 + 16 * t + 4 * j
            P(f'v_mfma_f32_16x16x32_bf16 v[{z}:{z + 3}], v[{2 + 4 * t}:{5 + 4 * t}], v[{16 + 4 * j}:{19 + 4 * j}], v[{z}:{z + 3}]')
    for q in range(4):
        zb = 96 + 8 * q
        for r in range(8): P(f'v_exp_f32 v{2 + r}, v{zb + r}')
        for r in range(0, 8, 2): P(f'v_pk_add_f32 v[{2 + r}:{3 + r}], v[{2 + r}:{3 + r}], 1.0 op_sel_hi:[1,0]')
        for r in range(8): P(f'v_rcp_f32 v{2 + r}, v{2 + r}')
        for r in range(0, 8, 2): P(f'v_pk_mul_f32 v[{zb + r}:{zb + r + 1}], v[{zb + r}:{zb + r + 1}], v[{2 + r}:{3 + r}]')
    for t in range(2):
        for p in range(2):
            d = 2 + 4 * t + 2 * p
            for j in range(4):
                z = 96 + 16 * t + 4 * j + 2 * p
                w = 10 + (j & 2); sel = j & 1
                if j == 0:
                    P(f'v_pk_mul_f32 v[{d}:{d + 1}], v[{z}:{z + 1}], v[{w}:{w + 1}] op_sel:[0,{sel}] op_sel_hi:[1,{sel}]')
                else:
                    P(f'v_pk_fma_f32 v[{d}:{d + 1}], v[{z}:{z + 1}], v[{w}:{w + 1}], v[{d}:{d + 1}] op_sel:[0,{sel},0] op_sel_hi:[1,{sel},1]')
    for j in range(4):
        a = 96 + 4 * j; b = 112 + 4 * j
        P(f'v_cvt_pk_bf16_f32 v{a}, v{a}, v{a + 1}')
        P(f'v_cvt_pk_bf16_f32 v{a + 1}, v{a + 2}, v{a + 3}')
        P(f'v_cvt_pk_bf16_f32 v{a + 2}, v{b}, v{b + 1}')
        P(f'v_cvt_pk_bf16_f32 v{a + 3}, v{b + 2}, v{b + 3}')
    for k in range(4):
        P(f'v_cvt_pk_bf16_f32 v{112 + k}, v{2 + 2 * k}, v{3 + 2 * k}')
    P('ds_read_b128 v[116:119], v14 offset:2048')
    P('ds_read_b128 v[120:123], v14 offset:3072') if False else None
    P('ds_read_b128 v[124:127], v14 offset:3072')
    P('ds_read_b128 v[2:5], v14 offset:4096')
    P('ds_read_b128 v[6:9], v14 offset:5120')
    for rt, reg, w in ((0, 116, 3), (1, 124, 2)):
        P(f's_waitcnt lgkmcnt({w})')
        for j in range(4):
            m = 32 + 16 * rt + 4 * j
            P(f'v_mfma_f32_16x16x32_bf16 v[{m}:{m + 3}], v[{reg}:{reg + 3}], v[{96 + 4 * j}:{99 + 4 * j}], v[{m}:{m + 3}]')
    P('ds_read_b128 v[116:119], v14 offset:6144')
    P('ds_read_b128 v[124:127], v14 offset:7168')
    for rt, reg, w in ((0, 2, 3), (1, 6, 2), (2, 116, 1), (3, 124, 0)):
        P(f's_waitcnt lgkmcnt({w})')
        m = 64 + 4 * rt
        P(f'v_mfma_f32_16x16x32_bf16 v[{m}:{m + 3}], v[{reg}:{reg + 3}], v[112:115], v[{m}:{m + 3}]')
    P(f'v_add_u32 v14, {2 * BS}, v14')
    P('s_cmp_lt_u32 s70, s71')
    P('s_cbranch_scc1 K2_BLK')
    g.label('K2_CDONE')
    g.fence()
    P('s_waitcnt vmcnt(0) lgkmcnt(0)')
    acc(3)
    P('s_setprio 3')
    P(f's_add_u32 s78, s67, {R}')
    P('s_cmp_ge_u32 s78, s66')
    P('s_cbranch_scc1 K2_NOS1')
    stage1('B', 's78')
    g.label('K2_NOS1')
    g.fence()
    P('s_waitcnt lgkmcnt(0)')
    P('s_barrier')
    acc(4)
    P(f's_add_u32 s67, s67, {R}')
    P('s_cmp_lt_u32 s67, s66')
    P('s_cbranch_scc1 K2_ROUND')
    P('s_nop 7'); P('s_nop 7')
    P('v_and_b32 v1, 63, v0')
    P('v_and_b32 v2, 15, v1')
    P('v_lshrrev_b32 v3, 4, v1')
    P('v_lshlrev_b32 v4, 4, v0')
    P('s_lshl_b32 s70, s61, 9')
    P('buffer_load_dwordx4 v[112:115], v4, s[40:43], s70 offen')
    P('s_add_u32 s71, s70, 8192')
    P('v_cmp_gt_u32 vcc, 128, v0')
    P('s_and_saveexec_b64 s[68:69], vcc')
    P('buffer_load_dwordx4 v[116:119], v4, s[40:43], s71 offen')
    P('s_mov_b64 exec, s[68:69]')
    P(f'v_cmp_gt_u32 vcc, {3 * T}, v0')
    P('s_and_saveexec_b64 s[68:69], vcc')
    P('s_mov_b32 s70, 0x0CCCCCCD')
    P('v_mul_hi_u32 v9, s70, v0')
    P(f'v_mul_u32_u24 v8, {T}, v9')
    P('v_sub_u32 v8, v0, v8')
    P('v_add_u32 v12, s61, v8')
    P('v_mul_u32_u24 v12, 6, v12')
    P('v_lshl_add_u32 v12, v9, 1, v12')
    P('buffer_load_ushort v13, v12, s[52:55], 0 offen')
    P('s_mov_b64 exec, s[68:69]')
    for r in range(64, 80):
        for sh in (1, 2, 4, 8):
            P(f'v_add_f32_dpp v{r}, v{r}, v{r} row_shr:{sh} row_mask:0xf bank_mask:0xf bound_ctrl:0')
    for r in range(4): P(f'v_mov_b32 v{96 + r}, 0')
    P('v_lshlrev_b32 v5, 4, v0')
    P(f'ds_write_b128 v5, v[96:99] offset:{XT + 20 * XPITCH}')
    P('v_cmp_gt_u32 vcc, 268, v0')
    P('s_and_saveexec_b64 s[68:69], vcc')
    P('v_add_u32 v6, 8192, v5')
    P(f'ds_write_b128 v6, v[96:99] offset:{XT + 20 * XPITCH}')
    P('s_mov_b64 exec, s[68:69]')
    P('v_lshlrev_b32 v5, 12, v3')
    P('v_lshl_add_u32 v5, v2, 4, v5')
    P('s_lshl_b32 s70, s62, 8')
    P(f's_mul_i32 s71, s63, {MH}')
    P('s_add_u32 s70, s70, s71')
    P('v_add_u32 v5, s70, v5')
    P('s_mov_b32 exec_lo, 0x80008000'); P('s_mov_b32 exec_hi, 0x80008000')
    P('v_lshlrev_b32 v6, 4, v3')
    P('s_lshl_b32 s70, s60, 8')
    P('v_add_u32 v6, s70, v6')
    for rt in range(4):
        P(f'ds_write_b128 v6, v[{64 + 4 * rt}:{67 + 4 * rt}] offset:{POSA + 16 * rt * 4}')
    P('s_mov_b64 exec, -1')
    for rt in range(2):
        for r in range(4):
            for j in range(4):
                P(f'v_mov_b32 v{80 + 16 * rt + 4 * r + j}, v{32 + 16 * rt + 4 * j + r}')
    for r in range(4):
        P(f'ds_write_b128 v5, v[{80 + 4 * r}:{83 + 4 * r}] offset:{MA + r * 1024}')
    P('s_mov_b64 exec, 0xffff')
    for r in range(4):
        P(f'ds_write_b128 v5, v[{96 + 4 * r}:{99 + 4 * r}] offset:{MA + (16 + r) * 1024}')
    P('s_mov_b64 exec, -1')
    P('s_lshl_b32 s70, s60, 5')
    P('v_add_u32 v4, s70, v2')
    P('v_lshlrev_b32 v4, 10, v4')
    P('v_lshl_add_u32 v4, v3, 4, v4')
    for ks in range(16):
        P(f'buffer_load_dwordx4 v[{16 + 4 * ks}:{19 + 4 * ks}], v4, s[48:51], 0 offen offset:{ks * 64}')
    P('v_add_u32 v120, 16384, v4')
    P('v_lshrrev_b32 v5, 5, v0')
    P('v_and_b32 v6, 31, v0')
    P(f'v_mul_u32_u24 v7, {XPITCH}, v5')
    P('v_lshl_add_u32 v7, v6, 4, v7')
    P(f'v_add_u32 v7, {XT}, v7')
    P('s_waitcnt vmcnt(17)')
    P('ds_write_b128 v7, v[112:115]')
    P('v_cmp_gt_u32 vcc, 128, v0')
    P('s_and_saveexec_b64 s[68:69], vcc')
    P(f'ds_write_b128 v7, v[116:119] offset:{16 * XPITCH}')
    P('s_mov_b64 exec, s[68:69]')
    P('s_waitcnt lgkmcnt(0)')
    P('s_barrier')
    acc(6)
    P(f's_mov_b32 s70, {NEG_LN2}')
    for hh in range(2):
        if hh:
            P('v_cmp_gt_u32 vcc, 128, v0')
            P('s_and_saveexec_b64 s[68:69], vcc')
        P('v_lshlrev_b32 v8, 10, v5')
        P('v_lshl_add_u32 v8, v6, 5, v8')
        P(f'ds_read_b128 v[96:99], v8 offset:{MA + hh * 16384}')
        P(f'ds_read_b128 v[100:103], v8 offset:{MA + hh * 16384 + 16}')
        P(f'ds_read_b128 v[104:107], v8 offset:{MA + MH + hh * 16384}')
        P(f'ds_read_b128 v[108:111], v8 offset:{MA + MH + hh * 16384 + 16}')
        P('s_waitcnt lgkmcnt(0)')
        for r in range(8): P(f'v_add_f32 v{96 + r}, v{96 + r}, v{104 + r}')
        for r in range(8): P(f'v_mul_f32 v{96 + r}, s70, v{96 + r}')
        for r in range(4): P(f'v_cvt_pk_bf16_f32 v{104 + r}, v{96 + 2 * r}, v{97 + 2 * r}')
        P(f'ds_write_b128 v7, v[104:107] offset:{512 + hh * 16 * XPITCH}')
        if hh: P('s_mov_b64 exec, s[68:69]')
    P(f'v_cmp_gt_u32 vcc, {3 * T}, v0')
    P('s_and_saveexec_b64 s[68:69], vcc')
    P('v_lshlrev_b32 v10, 2, v0')
    for w_ in range(8):
        P(f'ds_read_b32 v{100 + w_}, v10 offset:{POSA + w_ * 256}')
    P('s_waitcnt vmcnt(16) lgkmcnt(0)')
    for w_ in range(1, 8):
        P(f'v_add_f32 v100, v100, v{100 + w_}')
    P('v_lshlrev_b32 v13, 16, v13')
    P('v_add_f32 v13, v13, v100')
    P('v_cvt_pk_bf16_f32 v13, v13, v13')
    P('s_mov_b32 s70, 5120000')
    P('buffer_store_short v13, v12, s[44:47], s70 offen')
    P('s_mov_b64 exec, s[68:69]')
    P('s_waitcnt lgkmcnt(0)')
    P('s_barrier')
    acc(7)
    P(f'v_mul_u32_u24 v5, {XPITCH}, v2')
    P('v_lshl_add_u32 v5, v3, 4, v5')
    P(f'v_add_u32 v5, {XT}, v5')
    for half in range(2):
        for nt in range(2):
            for ks in range(16):
                P(f'ds_read_b128 v[{96 + 4 * (ks % 4)}:{99 + 4 * (ks % 4)}], v5 offset:{nt * 16 * XPITCH + ks * 64}')
                if ks % 4 == 3:
                    for kk in range(4):
                        kq = ks - 3 + kk
                        if nt == 0:
                            P(f's_waitcnt vmcnt({15 - kq}) lgkmcnt({3 - kk})')
                        else:
                            P(f's_waitcnt lgkmcnt({3 - kk})')
                        c = '0' if kq == 0 else f'v[{80 + 4 * nt}:{83 + 4 * nt}]'
                        P(f'v_mfma_f32_16x16x32_bf16 v[{80 + 4 * nt}:{83 + 4 * nt}], v[{16 + 4 * kq}:{19 + 4 * kq}], v[{96 + 4 * kk}:{99 + 4 * kk}], {c}')
                    if half == 0 and nt == 1:
                        P('s_nop 7')
                        for kk in range(4):
                            kq = ks - 3 + kk
                            P(f'buffer_load_dwordx4 v[{16 + 4 * kq}:{19 + 4 * kq}], v120, s[48:51], 0 offen offset:{kq * 64}')
        P('s_mov_b32 s70, 0xbfb8aa3b')
        P('s_lshl_b32 s71, s60, 6')
        P(f's_add_u32 s71, s71, {half * 32}')
        P('v_lshlrev_b32 v6, 3, v3')
        P('v_add_u32 v6, s71, v6')
        for nt in range(2):
            P(f'v_add_u32 v7, {16 * nt}, v2')
            P(f'v_mul_u32_u24 v8, {XPITCH}, v7')
            P('v_add_u32 v8, v8, v6')
            P(f'ds_read_b64 v[10:11], v8 offset:{XT}')
            for r in range(4): P(f'v_mul_f32 v{96 + r}, s70, v{80 + 4 * nt + r}')
            for r in range(4): P(f'v_exp_f32 v{96 + r}, v{96 + r}')
            for r in range(4): P(f'v_add_f32 v{96 + r}, 1.0, v{96 + r}')
            for r in range(4): P(f'v_rcp_f32 v{96 + r}, v{96 + r}')
            for r in range(4): P(f'v_mul_f32 v{96 + r}, v{96 + r}, v{80 + 4 * nt + r}')
            P('s_waitcnt lgkmcnt(0)')
            P('v_lshlrev_b32 v100, 16, v10')
            P('v_and_b32 v101, 0xffff0000, v10')
            P('v_lshlrev_b32 v102, 16, v11')
            P('v_and_b32 v103, 0xffff0000, v11')
            for r in range(4): P(f'v_add_f32 v{96 + r}, v{96 + r}, v{100 + r}')
            P(f'v_cvt_pk_bf16_f32 v{122 + 2 * nt}, v96, v97')
            P(f'v_cvt_pk_bf16_f32 v{123 + 2 * nt}, v98, v99')
            P('v_add_u32 v9, s61, v7')
            P('v_lshlrev_b32 v9, 9, v9')
            P('v_add_u32 v9, v9, v6')
            P(f'v_cmp_gt_u32 vcc, {T}, v7')
            P('s_and_saveexec_b64 s[68:69], vcc')
            P(f'buffer_store_dwordx2 v[{122 + 2 * nt}:{123 + 2 * nt}], v9, s[44:47], 0 offen')
            P('s_mov_b64 exec, s[68:69]')
    acc(1)
    if PROF:
        srd(64, 20, 21, 0x1000000, 0x3000000)
        for k in range(8): P(f'v_mov_b32 v{2 + k}, s{80 + k}')
        P('s_lshl_b32 s70, s2, 8')
        P('s_lshl_b32 s71, s60, 5')
        P('s_add_u32 s70, s70, s71')
        P('v_mov_b32 v1, 0')
        P('s_mov_b64 exec, 1')
        P('buffer_store_dwordx4 v[2:5], v1, s[64:67], s70 offen')
        P('buffer_store_dwordx4 v[6:9], v1, s[64:67], s70 offen offset:16')
    g.label('K2_END')
    P('s_endpgm')

if __name__ == '__main__':
    header()
    k1()
    k2()
    kernel_desc('egnn_prep_kernel', 112)
    kernel_desc('gather_scatter__cheap_equivariant_egnn__graph_kernel', 128)
    out = sys.argv[1] if len(sys.argv) > 1 else 'k2.s'
    open(out, 'w').write(g.text())
```
